```python
import torch

def _softmax(x, axis=-1):
    return torch.softmax(x, dim=axis)
def _gelu(x):
    return torch.nn.functional.gelu(x, approximate="tanh")
def _silu(x):
    return torch.nn.functional.silu(x)
def _sigmoid(x):
    return torch.sigmoid(x)
def _layernorm(x, axis=-1, eps=1e-5):
    m = x.mean(dim=axis, keepdim=True)
    v = x.var(dim=axis, keepdim=True, unbiased=False)
    return (x - m) / torch.sqrt(v + eps)
def _scatter_add(tgt, idx, src, axis=0):
    return tgt.clone().index_add_(axis, idx, src)
def _segment_sum(src, seg, n):
    out = torch.zeros((n,) + src.shape[1:], dtype=src.dtype)
    return out.index_add_(0, seg, src)
def _pad(x, pw):
    flat = tuple(v for pair in reversed(pw) for v in pair)
    return torch.nn.functional.pad(x, flat)

kernel_name = 'gated_mix__sliding_block__moe_arch_mod__prompt'

def setup_inputs():

    _w = (lambda a: (lambda t: t.to(torch.bfloat16) if t.is_floating_point() else t)(torch.as_tensor(a)))
    def _A_setup():
        B, S, D = 1, 2048, 640
        return {
            "x": _w((lambda *s: torch.randn(*s, dtype=torch.bfloat16) * 0.05)(B, S, D)),
            "wqkv": _w((lambda *s: torch.randn(*s, dtype=torch.bfloat16) * 1.6)(D, 3 * D)),
            "wo": _w((lambda *s: torch.randn(*s, dtype=torch.bfloat16) * 0.05)(D, D)),
        }
    _A_in = _A_setup()

    def _B_setup():
        B, S, D, F, C = 1, 2048, 640, 1536, 8
        return {
            "x": _w((lambda *s: torch.randn(*s, dtype=torch.bfloat16) * 0.05)(B, S, D)),
            "w_r": _w((lambda *s: torch.randn(*s, dtype=torch.bfloat16) * 3.2)(D)),
            "w_gate": _w((lambda *s: torch.randn(*s, dtype=torch.bfloat16) * 0.4)(D, F)),
            "w_up": _w((lambda *s: torch.randn(*s, dtype=torch.bfloat16) * 0.4)(D, F)),
            "w_down": _w((lambda *s: torch.randn(*s, dtype=torch.bfloat16) * 0.4)(F, D)),
        }
    _B_in = _B_setup()

    return {
        "A_x": _A_in["x"],
        "A_wqkv": _A_in["wqkv"],
        "A_wo": _A_in["wo"],
        "B_x": _B_in["x"],
        "B_w_r": _B_in["w_r"],
        "B_w_gate": _B_in["w_gate"],
        "B_w_up": _B_in["w_up"],
        "B_w_down": _B_in["w_down"],
        "gate_w": _w((lambda *s: torch.randn(*s, dtype=torch.bfloat16) * 0.05)(640) * 16.0),
    }

def reference(A_x, A_wqkv, A_wo, B_x, B_w_r, B_w_gate, B_w_up, B_w_down, gate_w):
    def _A_ref(x, wqkv, wo):
        B, S, D = x.shape
        H = 32; Dh = D // H; W = 256
        qkv = (lambda x, *d: x.permute(*d))((x @ wqkv).reshape(B, S, 3, H, Dh), 2, 0, 3, 1, 4)
        q, k, v = qkv[0], qkv[1], qkv[2]
        scores = torch.einsum("bhqd,bhkd->bhqk", q, k) * (Dh ** -0.5)
        idx = torch.arange(S)
        mask = (idx[:, None] - idx[None, :] >= 0) & (idx[:, None] - idx[None, :] < W)
        scores = torch.where(mask[None, None], scores, -1e9)
        p = _softmax(scores, axis=-1)
        o = torch.einsum("bhqk,bhkd->bhqd", p, v)
        return (lambda x, *d: x.permute(*d))(o, 0, 2, 1, 3).reshape(B, S, D) @ wo

    def _B_ref(x, w_r, w_gate, w_up, w_down):
        B, S, D = x.shape
        C = 8
        r = x @ w_r
        idx = torch.argsort(-r, axis=-1)[:, :C]
        idx_e = (lambda x, n, axis: torch.repeat_interleave(x, n, dim=axis))(idx.reshape(B, C, 1), D, axis=2)
        x_sel = (lambda x, i, axis: torch.take_along_dim(x, i, dim=axis))(x, idx_e, axis=1)
        g = _silu(x_sel @ w_gate)
        u = x_sel @ w_up
        y = (g * u) @ w_down
        r_sel = _sigmoid((lambda x, i, axis: torch.take_along_dim(x, i, dim=axis))(r, idx, axis=1))
        y = y * r_sel.reshape(B, C, 1)
        b_off = (torch.arange(B) * S).reshape(B, 1)
        flat_idx = (idx + b_off).reshape(B * C)
        zero = (x * 0.0).reshape(B * S, D)
        upd = _scatter_add(zero, flat_idx, y.reshape(B * C, D), axis=0)
        return x + upd.reshape(B, S, D)

    x = A_x
    g = _sigmoid((x * gate_w).sum(-1, keepdims=True))
    a = _A_ref(x, A_wqkv, A_wo)
    b = _B_ref(x, B_w_r, B_w_gate, B_w_up, B_w_down)
    return g * a + (1 - g) * b
```

```python
import re

TRANS = ("v_exp_f32","v_log_f32","v_rcp_f32","v_rsq_f32","v_sqrt_f32","v_sin_f32","v_cos_f32","v_rcp_iflag_f32")

def parse_regs(op):
    op = op.strip()
    op = op.lstrip('-')
    if op.startswith("abs(") : op = op[4:-1]
    if op.startswith("|"): op = op.strip("|")
    m = re.fullmatch(r"([vsa])(\d+)", op)
    if m: return {(m.group(1), int(m.group(2)))}
    m = re.fullmatch(r"([vsa])\[(\d+):(\d+)\]", op)
    if m: return {(m.group(1), i) for i in range(int(m.group(2)), int(m.group(3))+1)}
    if op in ("vcc","vcc_lo","vcc_hi"): return {("vcc",0)}
    if op in ("exec","exec_lo","exec_hi"): return {("exec",0)}
    if op == "m0": return {("m0",0)}
    return set()

def split_ops(rest):
    out=[]; depth=0; cur=""
    for ch in rest:
        if ch in "[(": depth+=1
        if ch in "])": depth-=1
        if ch=="," and depth==0: out.append(cur.strip()); cur=""
        else: cur+=ch
    if cur.strip(): out.append(cur.strip())
    mods=""
    if out:
        parts = out[-1].split(None,1)
        out[-1]=parts[0]
        if len(parts)>1: mods=parts[1]
    return out, mods

def mfma_passes(mn):
    if "32x32x16" in mn or "32x32x8" in mn: return 8
    if "16x16x32" in mn or "16x16x16" in mn: return 4
    raise ValueError(mn)

class Ins:
    def __init__(self, text):
        self.text = text
        t = text.split(";")[0].strip()
        self.kind = "none"; self.w=set(); self.r=set(); self.mn=""
        self.states = 0
        if not t or t.endswith(":") or t.startswith("."):
            self.kind = "label" if t.endswith(":") else "none"; return
        p = t.split(None,1); mn = p[0]; self.mn = mn
        ops, mods = split_ops(p[1]) if len(p)>1 else ([], "")
        self.mods = mods; self.ops = ops
        R = [parse_regs(o) for o in ops]
        self.states = 1
        if mn == "s_nop": self.states = int(ops[0],0)+1; self.kind="salu"; return
        if mn.startswith("v_mfma"):
            self.kind="mfma"; self.w=R[0]; self.a=R[1]; self.b=R[2]; self.c=R[3]; self.r=R[1]|R[2]|R[3]
            self.passes=mfma_passes(mn); return
        if mn.startswith("v_"):
            self.kind="valu"; self.trans = any(mn.startswith(x) for x in TRANS)
            self.dpp = ("_dpp" in mn) or ("row_" in mods) or ("quad_perm" in mods)
            self.dot = mn.startswith("v_dot")
            if mn.startswith("v_cmp"):
                self.w=R[0]; self.r=set().union(*R[1:])
            elif mn.startswith(("v_add_co","v_sub_co","v_addc_co","v_subb_co","v_subrev_co","v_mad_u64","v_div_scale")):
                self.w=R[0]|R[1]; self.r=set().union(*R[2:])
            elif mn.startswith(("v_permlane32_swap","v_permlane16_swap","v_swap")):
                self.w=R[0]|R[1]; self.r=R[0]|R[1]
            else:
                self.w=R[0]; self.r=set().union(*R[1:]) if len(R)>1 else set()
                if mn.startswith(("v_fmac","v_dot2c","v_writelane","v_pk_fmac")) or self.dpp: self.r|=R[0]
            return
        if mn.startswith("ds_"):
            self.kind="ds"
            if mn.startswith(("ds_read","ds_bpermute","ds_permute","ds_swizzle")) or "_rtn" in mn:
                self.w=R[0]; self.r=set().union(*R[1:])
            else: self.r=set().union(*R)
            return
        if mn.startswith(("buffer_","global_","flat_")):
            self.kind="vmem"; self.lds = " lds" in (" "+mods) or "_lds_" in mn
            self.store_data=set()
            if mn in ("buffer_wbl2","buffer_inv"): return
            if "load" in mn and not self.lds:
                self.w=R[0]; self.r=set().union(*R[1:])
            elif "atomic" in mn and "sc0" in mods:
                if mn.startswith("buffer_"): self.w=R[0]; self.r=set().union(*R)
                else: self.w=R[0]; self.r=set().union(*R[1:])
            else:
                self.r=set().union(*R)
                if "store" in mn and ("x3" in mn or "x4" in mn):
                    self.store_data = R[0] if mn.startswith("buffer_") else R[1]
            if self.lds: self.r|={("m0",0)}
            return
        if mn.startswith("s_"):
            self.kind="salu"
            if mn.startswith(("s_cmp","s_waitcnt","s_barrier","s_branch","s_cbranch","s_endpgm","s_sleep","s_setprio","s_bitcmp")):
                self.r=set().union(*R) if R else set()
            else:
                self.w=R[0] if R else set(); self.r=set().union(*R[1:]) if len(R)>1 else set()
                if "saveexec" in mn: self.w|={("exec",0)}
            return
        raise ValueError("unknown instr: "+text)

def need(prev, cur):
    n=0
    isv = lambda s: {x for x in s if x[0] in "va" and len(x[0])==1}
    iss = lambda s: {x for x in s if x[0] in ("s","vcc")}
    if prev.kind=="valu":
        wv=isv(prev.w); ws=iss(prev.w)
        if cur.kind=="mfma" and wv & cur.r: n=max(n,3 if prev.dot else 2)
        if cur.kind=="valu":
            if cur.dpp and wv & cur.r: n=max(n,2)
            if cur.mn.startswith(("v_readlane","v_readfirstlane")) and wv & cur.r: n=max(n,1)
            if cur.mn.startswith("v_permlane") and wv & cur.r: n=max(n,2)
            if prev.trans and not cur.trans and wv & cur.r: n=max(n,1)
            if ws & cur.r:
                n=max(n,2)
                if cur.mn.startswith(("v_readlane","v_writelane")): n=max(n,4)
            if cur.mn.startswith("v_cndmask") and ("vcc",0) in ws and len(cur.ops)<=4 and ("vcc",0) in cur.r: n=max(n,2)
            if prev.dot and (wv & (cur.r|cur.w)):
                if cur.mn==prev.mn:
                    ab = parse_regs(cur.ops[1])|parse_regs(cur.ops[2])
                    if wv & ab: n=max(n,3)
                else: n=max(n,3)
            if ("sdwa" in prev.mn or "op_sel" in getattr(prev,"mods","")) and wv & cur.r: n=max(n,1)
        if prev.dot and cur.kind in ("ds","vmem") and wv & cur.r: n=max(n,3)
        if cur.kind=="vmem" and ws & cur.r: n=max(n,5)
        if cur.kind=="salu" and ws & cur.r: n=max(n,1)
        if ("exec",0) in prev.w: n=max(n,5)
    if prev.kind=="salu":
        if ("m0",0) in prev.w and cur.kind=="vmem" and cur.lds: n=max(n,1)
    if prev.kind=="vmem" and prev.store_data:
        if cur.kind in ("valu","mfma") and prev.store_data & cur.w: n=max(n,2)
        elif prev.store_data & cur.w: n=max(n,1)
    if prev.kind=="mfma":
        P={4:(8,6,3),8:(12,10,7)}[prev.passes]
        if cur.kind=="mfma":
            if prev.w & (cur.a|cur.b): n=max(n,P[0])
            if prev.w & cur.c:
                if not (prev.w==cur.c and prev.passes==cur.passes): n=max(n,P[1])
            elif prev.w & cur.w: n=max(n,P[1])
        elif cur.kind in ("valu","ds","vmem"):
            if prev.w & (cur.r|cur.w): n=max(n,P[0])
            if cur.kind=="valu" and prev.c & cur.w: n=max(n,P[2])
            if cur.kind in ("ds","vmem") and prev.c & cur.w: n=max(n,P[2])
    return n

def fix_hazards(lines):
    out=[]; hist=[]
    for ln in lines:
        ins=Ins(ln)
        if ins.kind in ("none","label"):
            out.append(ln); continue
        req=0; dist=0
        for p in reversed(hist):
            nd=need(p,ins)
            if nd>dist: req=max(req, nd-dist)
            dist+=p.states
            if dist>=20: break
        while req>0:
            k=min(req,16); nop=Ins(f"s_nop {k-1}"); out.append(f"    s_nop {k-1}"); hist.append(nop); req-=k
        out.append(ln); hist.append(ins)
        if ins.mn in ("s_endpgm","s_branch"): hist=[]
        if len(hist)>40: hist=hist[-40:]
    return out

class Asm:
    def __init__(self): self.lines=[]
    def __call__(self, s):
        for l in s.split("\n"):
            l=l.strip()
            if not l: continue
            self.lines.append(l if (l.endswith(":") or l.startswith(".")) else "    "+l)
    def label(self, n): self.lines.append(n+":")
    def text(self): return "\n".join(fix_hazards(self.lines))+"\n"

def vr(b,n=1): return f"v{b}" if n==1 else f"v[{b}:{b+n-1}]"
def sr(b,n=1): return f"s{b}" if n==1 else f"s[{b}:{b+n-1}]"
```

```python
import sys, struct
from asmlib import *

NAME = "gated_mix__sliding_block__moe_arch_mod__prompt"
US = 16640
WS_QKV = 0;          SZ_QKV = 480*US
WS_O   = 0x800000;   SZ_O   = 160*US
WS_SM  = 0xB00000
SM_CAND = 0; SM_SEL = 0x400; SM_G = 0x1000; SM_YP = 0x10000
SZ_SM  = SM_YP + 24*8*640*4
def f32(x): return "0x%08x" % struct.unpack("<I", struct.pack("<f", x))[0]
QSCALE = (20 ** -0.5) * 1.4426950408889634
LOG2E = 1.4426950408889634
NEGBIG = -1.0e30

def srd(a, d, plo, off, size):
    if off:
        a(f"s_add_u32 s{d}, s{plo}, {off}")
        a(f"s_addc_u32 s{d+1}, s{plo+1}, 0")
    else:
        a(f"s_mov_b32 s{d}, s{plo}")
        a(f"s_mov_b32 s{d+1}, s{plo+1}")
    a(f"s_mov_b32 s{d+2}, {size}")
    a(f"s_mov_b32 s{d+3}, 0x20000")

def top8(a, va, vb, vt, sk):
    for r in range(8):
        a(f"v_max_u32 v{vt}, v{va}, v{vb}")
        for sh in (1,2,4,8):
            a(f"v_max_u32_dpp v{vt}, v{vt}, v{vt} row_shr:{sh} row_mask:0xf bank_mask:0xf")
        a(f"v_max_u32_dpp v{vt}, v{vt}, v{vt} row_bcast:15 row_mask:0xa bank_mask:0xf")
        a(f"v_max_u32_dpp v{vt}, v{vt}, v{vt} row_bcast:31 row_mask:0xc bank_mask:0xf")
        a(f"v_readlane_b32 s{sk+r}, v{vt}, 63")
        if r < 7:
            a(f"v_cmp_ne_u32 vcc, s{sk+r}, v{va}")
            a(f"v_cndmask_b32 v{va}, 0, v{va}, vcc")
            a(f"v_cmp_ne_u32 vcc, s{sk+r}, v{vb}")
            a(f"v_cndmask_b32 v{vb}, 0, v{vb}, vcc")

def sigmoid(a, vd, vs, slog):
    a(f"v_mul_f32 v{vd}, s{slog}, v{vs}")
    a(f"v_exp_f32 v{vd}, v{vd}")
    a(f"v_add_f32 v{vd}, 1.0, v{vd}")
    a(f"v_rcp_f32 v{vd}, v{vd}")

def rnd_bf16(a, vd, vs):
    a(f"v_cvt_pk_bf16_f32 v{vd}, v{vs}, v{vs}")
    a(f"v_and_b32 v{vd}, 0xffff0000, v{vd}")

def kd(name, vgpr, sgpr=96):
    acc = (vgpr+3)//4*4
    return f""".section .rodata,"a"
.p2align 6
.amdhsa_kernel {name}
  .amdhsa_next_free_vgpr {vgpr}
  .amdhsa_next_free_sgpr {sgpr}
  .amdhsa_accum_offset {acc}
  .amdhsa_group_segment_fixed_size 0
  .amdhsa_kernarg_size 96
  .amdhsa_user_sgpr_count 2
  .amdhsa_user_sgpr_kernarg_segment_ptr 1
  .amdhsa_system_sgpr_workgroup_id_x 1
.end_amdhsa_kernel
"""

def khead(a, name):
    a(f".text\n.globl {name}\n.p2align 8\n.type {name},@function")
    a.label(name)

K1_D = 4
K1_LDS = K1_D*32768
def gen_k1(a):
    nm = "qkv_kernel"; khead(a, nm)
    D = K1_D
    a(f"""
    s_load_dwordx4 s[4:7], s[0:1], 0
    s_load_dwordx2 s[8:9], s[0:1], 88
    s_load_dwordx2 s[10:11], s[0:1], 32
    s_load_dwordx2 s[12:13], s[0:1], 64
    s_cmp_ge_u32 s2, 256
    s_cbranch_scc1 K1_END
    s_and_b32 s20, s2, 7
    s_lshr_b32 s21, s2, 3
    s_and_b32 s22, s21, 1
    s_lshl_b32 s20, s20, 1
    s_add_u32 s20, s20, s22          ; m tile
    s_lshr_b32 s21, s21, 1           ; n tile
    v_lshrrev_b32 v1, 6, v0
    v_and_b32 v0, 63, v0
    v_readfirstlane_b32 s23, v1      ; wave
    s_waitcnt lgkmcnt(0)
    """)
    srd(a, 40, 4, 0, 2048*1280)
    a("s_cmp_eq_u32 s21, 15\ns_cbranch_scc1 K1_R")
    a("s_cmp_lt_u32 s23, 4\ns_cbranch_scc1 K1_C")
    srd(a, 44, 6, 0, 640*3840)
    a(f"""
    s_sub_u32 s23, s23, 4
    v_lshrrev_b32 v1, 3, v0          ; l/8
    v_lshrrev_b32 v2, 4, v0          ; l/16
    v_and_b32 v3, 7, v0
    v_xor_b32 v3, v3, v2
    s_lshl_b32 s24, s20, 7
    s_lshl_b32 s25, s23, 5
    s_add_u32 s24, s24, s25
    v_add_u32 v1, s24, v1
    v_mul_u32_u24 v1, 1280, v1
    v_lshl_add_u32 v4, v3, 4, v1     ; vA0
    v_xor_b32 v5, 64, v4             ; vA1
    v_and_b32 v3, 15, v0
    v_lshlrev_b32 v6, 2, v2
    v_xor_b32 v3, v3, v6
    s_lshl_b32 s25, s23, 4
    v_add_u32 v2, s25, v2
    v_mul_u32_u24 v2, 3840, v2
    v_lshl_add_u32 v6, v3, 4, v2
    s_lshl_b32 s25, s21, 8
    v_add_u32 v6, s25, v6            ; vB
    s_lshl_b32 s29, s23, 12
    s_mul_i32 s30, s20, 3
    s_add_u32 s30, s30, s21          ; rotation 0..59
    s_mul_i32 s31, s30, 26
    s_lshr_b32 s31, s31, 8           ; /10
    s_mul_i32 s31, s31, 10
    s_sub_u32 s30, s30, s31
    """)
    def issue(p):
        slot = p % D
        a(f"s_lshl_b32 s32, s30, 7\ns_mul_i32 s33, s30, {64*3840}")
        a(f"s_add_u32 s30, s30, 1\ns_cmp_eq_u32 s30, 10\ns_cselect_b32 s30, 0, s30")
        for i in range(4):
            a(f"s_add_u32 m0, s29, {slot*32768 + i*1024}")
            if i: a(f"s_add_u32 s32, s32, {8*1280}")
            a(f"buffer_load_dwordx4 v{4+(i&1)}, s[40:43], s32 offen lds")
            a(f"s_add_u32 m0, s29, {slot*32768 + 16384 + i*1024}")
            if i: a(f"s_add_u32 s33, s33, {4*3840}")
            a(f"buffer_load_dwordx4 v6, s[44:47], s33 offen lds")
    for p in range(D): issue(p)
    issued = D
    for s in range(10):
        a(f"s_waitcnt vmcnt({8*(issued-s-1)})\ns_barrier")
        if s >= 1 and issued < 10: issue(issued); issued += 1
    a("s_endpgm")
    a.label("K1_C")
    srd(a, 48, 8, WS_QKV, SZ_QKV)
    XA=2; WB=10; ST=14; ACC=16; FR=80
    a(f"""
    s_and_b32 s24, s23, 1            ; wm
    s_lshr_b32 s25, s23, 1           ; wn
    v_and_b32 v1, 31, v0             ; l%32
    v_lshrrev_b32 v14, 5, v0         ; hh
    v_bfe_u32 v15, v0, 1, 3
    v_xor_b32 v15, v15, v14
    v_lshlrev_b32 v15, 4, v15
    v_lshl_add_u32 v{XA}, v1, 7, v15
    s_lshl_b32 s26, s24, 13
    v_add_u32 v{XA}, s26, v{XA}
    v_xor_b32 v{XA+1}, 32, v{XA}
    v_xor_b32 v{XA+2}, 64, v{XA}
    v_xor_b32 v{XA+3}, 96, v{XA}
    """)
    for k in range(4): a(f"v_add_u32 v{XA+4+k}, 0x10000, v{XA+k}")
    a(f"""
    v_bfe_u32 v15, v0, 2, 2          ; i/4
    v_lshl_add_u32 v{WB}, v14, 3, v15 ; k_local
    v_lshlrev_b32 v{WB}, 8, v{WB}
    s_lshl_b32 s26, s25, 1
    v_xor_b32 v15, s26, v15          ; cb ^ (i/4)
    v_lshl_add_u32 v{WB}, v15, 6, v{WB}
    v_bfe_u32 v15, v0, 4, 1          ; colhalf
    v_lshl_add_u32 v{WB}, v15, 5, v{WB}
    v_and_b32 v15, 3, v0
    v_lshl_add_u32 v{WB}, v15, 3, v{WB}
    v_add_u32 v{WB}, 16384, v{WB}
    v_xor_b32 v{WB+1}, 64, v{WB}
    v_add_u32 v{WB+2}, 0x10000, v{WB}
    v_add_u32 v{WB+3}, 0x10000, v{WB+1}
    ; store voffset: hh*US + (128m + 64wm + l%32)*8 ; unit base (32n+16wn)*US in s27
    s_mov_b32 s26, {US}
    v_mul_lo_u32 v{ST}, s26, v14
    v_lshl_add_u32 v{ST}, v1, 3, v{ST}
    s_lshl_b32 s26, s20, 10
    s_lshl_b32 s27, s24, 9
    s_add_u32 s26, s26, s27
    v_add_u32 v{ST}, s26, v{ST}
    s_lshl_b32 s27, s21, 1
    s_add_u32 s27, s27, s25
    s_mul_i32 s27, s27, {16*US}
    """)
    def X(buf, rb): return FR + buf*16 + rb*4
    def W(buf, c): return FR + buf*16 + 8 + c*4
    def acc(c, rb): return ACC + (c*2+rb)*16
    def reads(t):
        s, ks = divmod(t, 4); slot = s % D; buf = t & 1
        hi = slot >= 2; so = (slot & 1)*32768
        for rb in range(2):
            a(f"ds_read_b128 {vr(X(buf,rb),4)}, v{XA+ks+(4 if hi else 0)} offset:{so+rb*4096}")
        for c in range(2):
            for tt in range(2):
                a(f"ds_read_b64_tr_b16 {vr(W(buf,c)+2*tt,2)}, v{WB+c+(2 if hi else 0)} offset:{so+(16*ks+4*tt)*256}")
    a("s_barrier"); reads(0)
    for t in range(40):
        if t+1 < 40:
            if (t+1) % 4 == 0:
                a("s_waitcnt lgkmcnt(0)\ns_barrier"); reads(t+1)
            else:
                reads(t+1); a("s_waitcnt lgkmcnt(6)")
        else:
            a("s_waitcnt lgkmcnt(0)")
        buf = t & 1
        for c in range(2):
            for rb in range(2):
                cop = "0" if t == 0 else vr(acc(c,rb),16)
                a(f"v_mfma_f32_32x32x16_bf16 {vr(acc(c,rb),16)}, {vr(W(buf,c),4)}, {vr(X(buf,rb),4)}, {cop}")
    a(f"s_nop 7\ns_nop 7\ns_cmp_ge_u32 s21, 5\ns_cbranch_scc1 K1_NOSC")
    a(f"s_mov_b32 s34, {f32(QSCALE)}\ns_mov_b32 s35, s34")
    for i in range(32): a(f"v_pk_mul_f32 {vr(ACC+2*i,2)}, {vr(ACC+2*i,2)}, s[34:35]")
    a.label("K1_NOSC")
    k = 0
    for c in range(2):
        for q in range(4):
            a(f"s_add_u32 s28, s27, {(8*c+2*q)*US}")
            for rb in range(2):
                b = acc(c,rb)+4*q; d = FR + 2*(k % 16); k += 1
                a(f"v_cvt_pk_bf16_f32 v{d}, v{b}, v{b+1}\nv_cvt_pk_bf16_f32 v{d+1}, v{b+2}, v{b+3}")
                a(f"buffer_store_dwordx2 {vr(d,2)}, v{ST}, s[48:51], s28 offen offset:{rb*256}")
    a("s_endpgm")
    a.label("K1_R")
    srd(a, 48, 8, WS_SM, SZ_SM)
    WR=8; WG=28; XR=48
    a(f"""
    v_and_b32 v1, 15, v0             ; j
    v_lshrrev_b32 v2, 4, v0          ; l/16
    v_lshlrev_b32 v3, 4, v1
    s_lshl_b32 s24, s20, 7
    s_lshl_b32 s25, s23, 4
    s_add_u32 s24, s24, s25
    v_add_u32 v4, s24, v2
    v_mul_u32_u24 v4, 1280, v4
    v_add_u32 v4, v4, v3
    """)
    for i in range(5):
        a(f"global_load_dwordx4 {vr(WR+4*i,4)}, v3, s[10:11] offset:{256*i}")
        a(f"global_load_dwordx4 {vr(WG+4*i,4)}, v3, s[12:13] offset:{256*i}")
    for p in range(4):
        a(f"s_mov_b32 s26, {p*5120}")
        for i in range(5):
            a(f"buffer_load_dwordx4 {vr(XR+20*p+4*i,4)}, v4, s[40:43], s26 offen offset:{256*i}")
    AR = [XR, XR+20, XR+40, XR+60]
    for p in range(4):
        a(f"s_waitcnt vmcnt({15-5*p})")
        a("v_mov_b32 v5, 0\nv_mov_b32 v6, 0")
        for i in range(20):
            a(f"v_dot2_f32_bf16 v5, v{XR+20*p+i}, v{WR+i}, v5")
            a(f"v_dot2_f32_bf16 v6, v{XR+20*p+i}, v{WG+i}, v6")
        for sh in (8,4,2,1):
            a(f"v_add_f32_dpp v5, v5, v5 row_ror:{sh} row_mask:0xf bank_mask:0xf")
            a(f"v_add_f32_dpp v6, v6, v6 row_ror:{sh} row_mask:0xf bank_mask:0xf")
        if p == 0:
            a(f"v_mov_b32 v{AR[0]}, v5\nv_mov_b32 v{AR[0]+1}, v6")
        else:
            a(f"v_cmp_eq_u32 vcc, {p}, v1")
            a(f"v_cndmask_b32 v{AR[0]}, v{AR[0]}, v5, vcc\nv_cndmask_b32 v{AR[0]+1}, v{AR[0]+1}, v6, vcc")
    R=AR[0]; G=AR[0]+1
    a(f"""
    v_lshl_add_u32 v2, v1, 2, v2
    v_add_u32 v7, s24, v2
    """)
    rnd_bf16(a, R, R)
    a(f"""
    v_ashrrev_i32 v5, 31, v{R}
    v_or_b32 v5, 0x80000000, v5
    v_xor_b32 v5, v5, v{R}
    v_and_b32 v5, 0xffff0000, v5
    v_sub_u32 v6, 0xffff, v7
    v_or_b32 v5, v5, v6              ; key
    s_mov_b32 s27, {f32(-LOG2E)}
    """)
    rnd_bf16(a, G, G)
    sigmoid(a, G, G, 27)
    rnd_bf16(a, G, G)
    a(f"""
    v_add_u32 v2, s25, v2
    v_lshlrev_b32 v2, 2, v2
    v_lshlrev_b32 v7, 2, v7
    v_cmp_gt_u32 vcc, 4, v1
    s_and_saveexec_b64 s[30:31], vcc
    ds_write_b32 v2, v5
    s_mov_b32 s26, {SM_G}
    buffer_store_dword v{G}, v7, s[48:51], s26 offen
    s_mov_b64 exec, s[30:31]
    s_waitcnt lgkmcnt(0)
    s_barrier
    s_cmp_lg_u32 s23, 0
    s_cbranch_scc1 K1_END
    v_lshlrev_b32 v2, 3, v0
    ds_read_b64 v[4:5], v2
    s_waitcnt lgkmcnt(0)
    """)
    top8(a, 4, 5, 6, 56)
    for r in range(8): a(f"v_mov_b32 v{8+r}, s{56+r}")
    a(f"""
    s_lshl_b32 s26, s20, 5
    v_mov_b32 v2, s26
    v_cmp_eq_u32 vcc, 0, v0
    s_and_saveexec_b64 s[30:31], vcc
    buffer_store_dwordx4 v[8:11], v2, s[48:51], 0 offen offset:{SM_CAND}
    buffer_store_dwordx4 v[12:15], v2, s[48:51], 0 offen offset:{SM_CAND+16}
    """)
    a.label("K1_END")
    a("s_endpgm")
    return nm, 128

NMOE = 48
UV = 4128; VB = 24576
K2_LDS = 76*1024
def gen_k2(a):
    nm = "attn_kernel"; khead(a, nm)
    a(f"""
    s_load_dwordx2 s[8:9], s[0:1], 88
    s_load_dwordx2 s[4:5], s[0:1], 0
    s_load_dwordx4 s[12:15], s[0:1], 40
    s_load_dwordx2 s[16:17], s[0:1], 56
    s_cmp_ge_u32 s2, {256+NMOE}
    s_cbranch_scc1 K2_END
    v_lshrrev_b32 v1, 6, v0
    v_lshlrev_b32 v2, 3, v0          ; tid*8
    v_and_b32 v0, 63, v0
    v_readfirstlane_b32 s23, v1      ; wave
    s_cmp_lt_u32 s2, {NMOE}
    s_cbranch_scc1 K2_MOE
    s_sub_u32 s20, s2, {NMOE}
    s_lshr_b32 s21, s20, 3           ; h
    s_and_b32 s20, s20, 7            ; c
    s_waitcnt lgkmcnt(0)
    """)
    srd(a, 40, 8, WS_QKV, SZ_QKV)
    KA0=3; KA1=4; VA=5; Q0=6; Q1=10; KF=12; VF=24; S0=40; P=72; CM=80; O=96; T=112
    a(f"""
    s_and_b32 s24, s23, 3
    s_lshr_b32 s25, s23, 2
    s_lshl_b32 s26, s20, 1
    s_add_u32 s26, s26, s24
    s_lshl_b32 s27, s26, 10
    s_sub_u32 s27, s27, 2048
    s_cmp_lt_u32 s26, 2
    s_cselect_b32 s27, 0x40000000, s27
    v_lshl_add_u32 v{T}, v0, 4, s27
    s_mul_i32 s28, s21, {5*US}       ; 5h*US
    s_mul_i32 s29, s25, {160*US}
    s_add_u32 s29, s29, s28
    s_add_u32 s29, s29, {160*US}
    s_mul_i32 s30, s25, {VB}
    s_lshl_b32 s31, s24, 10
    s_add_u32 s30, s30, s31
    s_lshl_b32 s31, s25, 5
    s_add_u32 s31, s31, 4096
    """)
    for u in range(5):
        a(f"s_mov_b32 m0, s30")
        a(f"buffer_load_dwordx4 v{T}, s[40:43], s29 offen lds")
        if u < 4: a(f"s_add_u32 s30, s30, s31\ns_add_u32 s29, s29, {US}")
    a(f"""
    v_and_b32 v1, 31, v0             ; i = l%32
    v_lshrrev_b32 v{T+1}, 5, v0      ; hh
    s_mov_b32 s29, {2*US}
    v_mul_lo_u32 v{T+2}, s29, v{T+1}
    s_lshl_b32 s29, s20, 3
    s_add_u32 s29, s29, s23
    s_lshl_b32 s29, s29, 8           ; (8c+w)*32*8
    v_lshl_add_u32 v{T+3}, v1, 3, s29 ; token*8
    v_add_u32 v{T+2}, v{T+2}, v{T+3}
    s_add_u32 s29, s28, {US}
    s_add_u32 s30, s28, {4*US}
    buffer_load_dwordx2 {vr(Q0,2)}, v{T+2}, s[40:43], s28 offen
    buffer_load_dwordx2 {vr(Q0+2,2)}, v{T+2}, s[40:43], s29 offen
    buffer_load_dwordx2 {vr(Q1,2)}, v{T+3}, s[40:43], s30 offen
    """)
    a(f"""
    s_cmp_eq_u32 s20, 0
    s_cselect_b32 s29, 0xf149, 0
    s_cmp_lt_u32 s23, 4
    s_cselect_b32 s29, s29, 0
    v_mov_b32 v{S0}, s29
    v_mov_b32 v{S0+1}, 0
    v_mov_b32 v{S0+2}, 0x3f803f80
    v_mov_b32 v{S0+3}, 0x3f803f80
    ds_write_b64 v2, {vr(S0,2)} offset:{5*4096}
    ds_write_b64 v2, {vr(S0+2,2)} offset:{VB+5*UV}
    ; addresses
    s_lshl_b32 s29, s23, 8           ; w*32*8
    v_lshl_add_u32 v{KA1}, v1, 3, s29
    v_lshl_add_u32 v{KA0}, v{T+1}, 13, v{KA1}
    v_lshl_add_u32 v{KA1}, v{T+1}, 12, v{KA1}
    v_bfe_u32 v{VA}, v0, 4, 1        ; dhalf
    v_and_b32 v{T+4}, 3, v0
    v_lshl_add_u32 v{VA}, v{VA}, 2, v{T+4}
    v_min_u32 v{VA}, 5, v{VA}
    v_mul_u32_u24 v{VA}, {UV}, v{VA}
    v_bfe_u32 v{T+4}, v0, 2, 2       ; r
    v_lshl_add_u32 v{T+4}, v{T+1}, 2, v{T+4}
    v_lshl_add_u32 v{VA}, v{T+4}, 3, v{VA}
    v_add_u32 v{VA}, s29, v{VA}
    ; masks
    v_lshlrev_b32 v{T+4}, 2, v{T+1}
    v_sub_u32 v{T+4}, v1, v{T+4}     ; i-4hh
    v_mov_b32 v{T+5}, {f32(NEGBIG)}
    """)
    MK = 56
    for r in range(16):
        a(f"v_cmp_le_i32 {sr(MK+2*r,2)}, {8*(r//4)+r%4}, v{T+4}")
    srd(a, 44, 8, WS_O, SZ_O)
    a(f"""
    v_cmp_eq_u32 vcc, 0, v{T+1}
    v_mov_b32 v{T+6}, 0x3f80
    s_waitcnt vmcnt(0)
    v_cndmask_b32 v{Q1}, v{T+6}, v{Q1}, vcc
    v_cndmask_b32 v{Q1+1}, 0, v{Q1+1}, vcc
    s_waitcnt lgkmcnt(0)
    s_barrier
    """)
    NEG = T+5; M = T+6
    def Sb(u): return S0 + 16*(u & 1)
    def Kb(u): return KF + 6*(u & 1)
    def Vb(u): return VF + 8*(u & 1)
    def kreads(u):
        b = u % 9
        a(f"ds_read_b64 {vr(Kb(u),2)}, v{KA0} offset:{b*256}")
        a(f"ds_read_b64 {vr(Kb(u)+2,2)}, v{KA0} offset:{4096+b*256}")
        a(f"ds_read_b64 {vr(Kb(u)+4,2)}, v{KA1} offset:{16384+b*256}")
    def vreads(u):
        b = u % 9
        for j in range(4):
            a(f"ds_read_b64_tr_b16 {vr(Vb(u)+2*j,2)}, v{VA} offset:{VB+b*256+j*64}")
    def maskinit(u):
        b = u % 9; good = "0" if u < 9 else f"v{CM}"
        for r in range(16):
            if b == 8: a(f"v_cndmask_b32 v{Sb(u)+r}, v{NEG}, {good}, {sr(MK+2*r,2)}")
            else:      a(f"v_cndmask_b32 v{Sb(u)+r}, {good}, v{NEG}, {sr(MK+2*r,2)}")
    def qk0(u):
        b = u % 9
        c = vr(Sb(u),16) if b in (0,8) else ("0" if u < 9 else vr(CM,16))
        return f"v_mfma_f32_32x32x16_bf16 {vr(Sb(u),16)}, {vr(Kb(u),4)}, {vr(Q0,4)}, {c}"
    def qk1(u):
        return f"v_mfma_f32_32x32x8_bf16 {vr(Sb(u),16)}, {vr(Kb(u)+4,2)}, {vr(Q1,2)}, {vr(Sb(u),16)}"
    kreads(0); kreads(1); maskinit(0)
    a(f"v_mov_b32 v{M}, v{NEG}")
    a("s_waitcnt lgkmcnt(3)"); a(qk0(0)); a(qk1(0))
    for u in range(9):
        if u < 8:
            if u+1 == 8: maskinit(8)
            a("s_waitcnt lgkmcnt(0)")
            a(qk0(u+1)); a(qk1(u+1))
        kreads(u+2)
        if u == 8: vreads(9)
        for r in range(8):
            a(f"v_max3_f32 v{M}, v{Sb(u)+2*r}, v{Sb(u)+2*r+1}, v{M}")
    a(f"""
    v_mov_b32 v{T+7}, v{M}
    v_permlane32_swap_b32 v{M}, v{T+7}
    v_max_f32 v{M}, v{M}, v{T+7}
    """)
    for r in range(16): a(f"v_sub_f32 v{CM+r}, 0, v{M}")
    maskinit(9)
    a("s_waitcnt lgkmcnt(7)"); a(qk0(9)); a(qk1(9))
    for u in range(9, 18):
        S = Sb(u); last = (u == 17)
        ex = [f"v_exp_f32 v{S+r}, v{S+r}" for r in range(16)]
        cv = [f"v_cvt_pk_bf16_f32 v{P+r}, v{S+2*r}, v{S+2*r+1}" for r in range(8)]
        if not last:
            if u+1 == 17: maskinit(17)
            a("s_waitcnt lgkmcnt(4)")
            a(qk0(u+1))
        for r in range(4): a(ex[r])
        if not last: a(qk1(u+1))
        if u+2 < 18: kreads(u+2)
        if not last: vreads(u+1)
        for r in range(4, 9): a(ex[r])
        for r in range(4): a(cv[r])
        for r in range(9, 12): a(ex[r])
        nout = (3 if u+2 < 18 else 0) + (0 if last else 4)
        a(f"s_waitcnt lgkmcnt({nout})")
        oc = "0" if u == 9 else vr(O,16)
        a(f"v_mfma_f32_32x32x16_bf16 {vr(O,16)}, {vr(Vb(u),4)}, {vr(P,4)}, {oc}")
        for r in range(12, 16): a(ex[r])
        for r in range(4, 8): a(cv[r])
        a(f"v_mfma_f32_32x32x16_bf16 {vr(O,16)}, {vr(Vb(u)+4,4)}, {vr(P+4,4)}, {vr(O,16)}")
    a(f"""
    s_mov_b32 s29, {US}
    v_mul_lo_u32 v{T+2}, s29, v{T+1}
    v_add_u32 v{T+2}, v{T+2}, v{T+3}
    v_lshl_or_b32 v{T+3}, v{T+1}, 30, v{T+3}
    s_add_u32 s29, s28, {2*US}
    v_rcp_f32 v{T}, v{O+12}
    """)
    for r in range(12): a(f"v_mul_f32 v{O+r}, v{O+r}, v{T}")
    for r in range(6): a(f"v_cvt_pk_bf16_f32 v{P+r}, v{O+2*r}, v{O+2*r+1}")
    a(f"""
    buffer_store_dwordx2 {vr(P,2)}, v{T+2}, s[44:47], s28 offen
    buffer_store_dwordx2 {vr(P+2,2)}, v{T+2}, s[44:47], s29 offen
    buffer_store_dwordx2 {vr(P+4,2)}, v{T+3}, s[44:47], s30 offen
    s_endpgm
    """)
    a.label("K2_MOE")
    HB = 0; RED = 2048; WD = RED + 32768
    L=16; XF=96; AC=L
    a(f"""
    s_cmp_ge_u32 s2, 24
    s_cselect_b32 s21, 1, 0          ; half
    s_cselect_b32 s20, 24, 0
    s_sub_u32 s20, s2, s20
    s_waitcnt lgkmcnt(0)
    """)
    srd(a, 40, 8, WS_SM, SZ_SM)
    srd(a, 44, 16, 0, 1536*1280)
    srd(a, 48, 4, 0, 2048*1280)
    a(f"""
    v_lshlrev_b32 v1, 3, v0
    buffer_load_dwordx2 v[4:5], v1, s[40:43], 0 offen offset:{SM_CAND}
    v_bfe_u32 v1, v0, 3, 1           ; mat
    v_cmp_eq_u32 vcc, 0, v1
    v_mov_b32 v6, s14
    v_mov_b32 v7, s15
    v_mov_b32 v8, s12
    v_mov_b32 v9, s13
    v_cndmask_b32 v6, v6, v8, vcc
    v_cndmask_b32 v7, v7, v9, vcc
    v_lshrrev_b32 v3, 4, v0          ; g
    s_mul_i32 s24, s23, 80
    v_lshl_add_u32 v8, v3, 2, s24    ; 80w + 4g
    v_mul_u32_u24 v9, 3072, v8
    v_and_b32 v10, 7, v0             ; c
    v_lshl_add_u32 v9, v10, 4, v9
    s_lshl_b32 s25, s20, 7
    v_add_u32 v9, s25, v9
    v_add_co_u32 v6, vcc, v6, v9
    v_addc_co_u32 v7, vcc, 0, v7, vcc
    s_mov_b32 s26, {2*3072}
    s_mov_b32 s27, 0
    s_mov_b32 s28, {14*3072}
    s_mov_b32 s29, 0
    """)
    for b in range(5):
        for i in range(4):
            a(f"global_load_dwordx4 {vr(L+16*b+4*i,4)}, v[6:7], off offset:{(i&1)*3072}")
            if i == 1: a("v_lshl_add_u64 v[6:7], v[6:7], 0, s[26:27]")
            if i == 3 and b < 4: a("v_lshl_add_u64 v[6:7], v[6:7], 0, s[28:29]")
    a(f"""
    s_lshl_b32 s24, s20, 6
    s_lshl_b32 s25, s23, 3
    s_add_u32 s24, s24, s25
    s_mul_i32 s24, s24, 1280
    s_mul_i32 s25, s21, 640
    s_add_u32 s24, s24, s25          ; soffset
    s_mul_i32 s25, s23, 5120
    s_add_u32 s25, s25, {WD}
    """)
    for i in range(5):
        a(f"""
        v_add_u32 v11, {64*i}, v0
        v_mul_u32_u24 v12, 1639, v11
        v_lshrrev_b32 v12, 16, v12       ; row = L/40
        v_mul_u32_u24 v13, 40, v12
        v_sub_u32 v11, v11, v13          ; pos
        v_and_b32 v13, 6, v12
        v_xor_b32 v11, v11, v13          ; chunk
        v_mul_u32_u24 v12, 1280, v12
        v_lshl_add_u32 v11, v11, 4, v12
        s_add_u32 m0, s25, {1024*i}
        buffer_load_dwordx4 v11, s[44:47], s24 offen lds
        """)
    a("s_waitcnt vmcnt(25)")
    top8(a, 4, 5, 11, 56)
    a(f"v_mov_b32 v4, s56")
    for r in range(1, 8):
        a(f"v_cmp_eq_u32 vcc, {r}, v10\nv_mov_b32 v5, s{56+r}\nv_cndmask_b32 v4, v4, v5, vcc")
    a(f"""
    v_and_b32 v5, 0xffff, v4
    v_sub_u32 v5, 0xffff, v5         ; idx
    v_mul_u32_u24 v5, 1280, v5
    v_lshl_add_u32 v5, v8, 1, v5     ; + (80w+4g)*2
    """)
    for b in range(5):
        a(f"buffer_load_dwordx2 {vr(XF+2*b,2)}, v5, s[48:51], 0 offen offset:{32*b}")
    a(f"""
    s_or_b32 s24, s2, s23
    s_cmp_lg_u32 s24, 0
    s_cbranch_scc1 K2_NOSEL
    v_lshlrev_b32 v11, 2, v0
    v_cmp_gt_u32 vcc, 8, v0
    s_and_saveexec_b64 s[30:31], vcc
    buffer_store_dword v4, v11, s[40:43], 0 offen offset:{SM_SEL}
    s_mov_b64 exec, s[30:31]
    """)
    a.label("K2_NOSEL")
    a("s_mov_b32 s24, 0x05040100\ns_mov_b32 s25, 0x07060302\ns_waitcnt vmcnt(0)")
    TP = 106
    ACC = [None]*8
    def perm(b, j, d):
        q = j//2; sel = 24 + (j & 1)
        a(f"v_perm_b32 v{d}, v{L+16*b+4+q}, v{L+16*b+q}, s{sel}")
        a(f"v_perm_b32 v{d+1}, v{L+16*b+12+q}, v{L+16*b+8+q}, s{sel}")
    for j in range(8): perm(0, j, TP+2*j)
    for j in range(4): ACC[j] = L+4*j
    for j in range(4): a(f"v_mfma_f32_16x16x16_bf16 {vr(ACC[j],4)}, {vr(XF,2)}, {vr(TP+2*j,2)}, 0")
    for j in range(4): perm(1, j, TP+2*j)
    for j in range(4): a(f"v_mfma_f32_16x16x16_bf16 {vr(ACC[j],4)}, {vr(XF+2,2)}, {vr(TP+2*j,2)}, {vr(ACC[j],4)}")
    for j in range(4, 8): perm(1, j, TP+2*(j-4))
    for j in range(4, 8): ACC[j] = L+16+4*(j-4)
    for j in range(4, 8): a(f"v_mfma_f32_16x16x16_bf16 {vr(ACC[j],4)}, {vr(XF,2)}, {vr(TP+2*j,2)}, 0")
    for j in range(4, 8): a(f"v_mfma_f32_16x16x16_bf16 {vr(ACC[j],4)}, {vr(XF+2,2)}, {vr(TP+2*(j-4),2)}, {vr(ACC[j],4)}")
    for b in range(2, 5):
        for j in range(8): perm(b, j, TP+2*j)
        for j in range(8): a(f"v_mfma_f32_16x16x16_bf16 {vr(ACC[j],4)}, {vr(XF+2*b,2)}, {vr(TP+2*j,2)}, {vr(ACC[j],4)}")
    a(f"""
    v_and_b32 v11, 15, v0
    v_lshlrev_b32 v11, 5, v11
    v_lshl_add_u32 v11, v3, 4, v11
    s_lshl_b32 s26, s23, 12
    v_add_u32 v11, s26, v11
    s_mov_b32 exec_hi, 0
    """)
    for j in range(8): a(f"ds_write_b128 v11, {vr(ACC[j],4)} offset:{RED+512*j}")
    a(f"""
    s_mov_b64 exec, -1
    s_lshl_b32 s26, s23, 9
    s_add_u32 s26, s26, {RED}
    v_lshl_add_u32 v11, v0, 2, s26
    s_waitcnt lgkmcnt(0)
    s_barrier
    """)
    for w in range(8): a(f"ds_read2st64_b32 {vr(48+2*w,2)}, v11 offset0:{16*w} offset1:{16*w+1}")
    a(f"s_mov_b32 s27, {f32(-LOG2E)}\ns_waitcnt lgkmcnt(0)")
    for w in range(1, 8): a(f"v_pk_add_f32 v[48:49], v[48:49], {vr(48+2*w,2)}")
    rnd_bf16(a, 48, 48); rnd_bf16(a, 49, 49)
    sigmoid(a, 50, 48, 27)
    a("v_mul_f32 v48, v48, v50"); rnd_bf16(a, 48, 48)
    a(f"""
    v_mul_f32 v48, v48, v49
    v_cvt_pk_bf16_f32 v48, v48, v48
    ; hbuf[t][f=8c+j], t = l%8, c = l/8, row stride 144
    v_mul_u32_u24 v11, 144, v10
    v_lshrrev_b32 v12, 3, v0
    v_lshl_add_u32 v12, v12, 4, v11
    s_lshl_b32 s26, s23, 1
    v_add_u32 v12, s26, v12
    ds_write_b16 v12, v48 offset:{HB}
    v_lshl_add_u32 v11, v3, 3, v11
    ; w_down tr address: row = 4g + i/4 ; chunk = 2cg + (i%4)/2 ; pos = chunk ^ (row & 6)
    v_bfe_u32 v12, v0, 2, 2
    v_lshl_add_u32 v12, v3, 2, v12   ; row
    v_and_b32 v13, 6, v12
    s_lshl_b32 s26, s23, 1
    v_xor_b32 v13, s26, v13
    v_lshlrev_b32 v13, 4, v13
    v_mul_u32_u24 v12, 640, v12
    v_add_u32 v12, v12, v13
    v_and_b32 v13, 3, v0
    v_lshl_add_u32 v12, v13, 3, v12
    v_add_u32 v12, {WD}, v12
    ; store offset: ((js*8+t)*640 + half*320 + 16w + 4g)*4 ; lanes with l%16>=8 out of range
    v_mul_u32_u24 v13, 2560, v10
    v_lshl_add_u32 v13, v3, 4, v13
    v_lshl_or_b32 v13, v1, 30, v13
    s_mul_i32 s26, s20, {8*2560}
    s_mul_i32 s28, s21, 1280
    s_add_u32 s26, s26, s28
    s_lshl_b32 s28, s23, 6
    s_add_u32 s26, s26, s28
    s_add_u32 s26, s26, {SM_YP}
    s_waitcnt lgkmcnt(0)
    s_barrier
    """)
    for s_ in range(2):
        for t in range(2):
            a(f"ds_read_b64 {vr(16+4*s_+2*t,2)}, v11 offset:{HB+64*s_+32*t}")
    for i in range(3):
        if i == 2: a("s_cmp_ge_u32 s23, 4\ns_cbranch_scc1 K2_END")
        for s_ in range(2):
            for t in range(2):
                a(f"ds_read_b64_tr_b16 {vr(24+8*i+4*s_+2*t,2)}, v12 offset:{(32*s_+16*t)*640+256*i}")
        a("s_waitcnt lgkmcnt(0)")
        d = 48+4*i
        a(f"v_mfma_f32_16x16x32_bf16 {vr(d,4)}, {vr(24+8*i,4)}, v[16:19], 0")
        a(f"v_mfma_f32_16x16x32_bf16 {vr(d,4)}, {vr(24+8*i+4,4)}, v[20:23], {vr(d,4)}")
        a(f"buffer_store_dwordx4 {vr(d,4)}, v13, s[40:43], s26 offen offset:{512*i}")
    a.label("K2_END")
    a("s_endpgm")
    return nm, 128

K3_YB = 0; K3_RED = 3072; K3_WO = K3_RED + 4*5*1024
K3_LDS = K3_WO + 640*160
def gen_k3(a):
    nm = "oproj_kernel"; khead(a, nm)
    a(f"""
    s_load_dwordx2 s[8:9], s[0:1], 88
    s_load_dwordx2 s[4:5], s[0:1], 0
    s_load_dwordx2 s[6:7], s[0:1], 16
    s_load_dwordx2 s[10:11], s[0:1], 72
    s_cmp_ge_u32 s2, 256
    s_cbranch_scc1 K3_END
    s_and_b32 s20, s2, 7
    s_lshr_b32 s21, s2, 3
    s_and_b32 s22, s21, 3
    s_lshl_b32 s20, s20, 2
    s_add_u32 s20, s20, s22          ; rb
    s_lshr_b32 s21, s21, 2           ; cb
    v_lshrrev_b32 v1, 6, v0
    v_and_b32 v0, 63, v0
    v_readfirstlane_b32 s23, v1
    s_waitcnt lgkmcnt(0)
    s_add_u32 s12, s8, {WS_SM}
    s_addc_u32 s13, s9, 0
    s_load_dwordx8 s[56:63], s[12:13], {SM_SEL}
    """)
    srd(a, 40, 6, 0, 640*1280)
    srd(a, 44, 8, WS_O, SZ_O)
    OF=16; ACC=56; WF=76; XV=100; T=106
    a(f"""
    v_mul_u32_u24 v1, 26, v0
    v_lshrrev_b32 v1, 8, v1          ; l/10
    v_mul_u32_u24 v2, 10, v1
    v_sub_u32 v2, v0, v2
    v_mul_u32_u24 v1, 1280, v1
    v_lshl_add_u32 v1, v2, 4, v1
    s_mul_i32 s24, s23, {80*1280}
    s_mul_i32 s25, s21, 160
    s_add_u32 s24, s24, s25
    s_mul_i32 s26, s23, {80*160}
    s_mov_b32 exec_hi, 0x3ffff
    """)
    for i in range(16):
        a(f"s_add_u32 m0, s26, {K3_WO+800*i}")
        a(f"buffer_load_dwordx4 v1, s[40:43], s24 offen lds")
        if i < 15: a(f"s_add_u32 s24, s24, {5*1280}")
    a(f"""
    s_mov_b64 exec, -1
    s_and_b32 s24, s23, 3            ; tg
    s_lshr_b32 s27, s23, 2           ; kh
    v_and_b32 v2, 15, v0
    v_lshrrev_b32 v3, 4, v0          ; g
    s_lshl_b32 s28, s20, 6
    s_lshl_b32 s29, s24, 4
    s_add_u32 s29, s29, s28
    v_add_u32 v4, s29, v2
    v_mul_u32_u24 v5, {US}, v3
    v_lshl_add_u32 v5, v4, 3, v5
    s_mul_i32 s30, s27, {80*US}
    """)
    for s_ in range(10):
        for t in range(2):
            a(f"buffer_load_dwordx2 {vr(OF+4*s_+2*t,2)}, v5, s[44:47], s30 offen")
            if not (s_ == 9 and t == 1): a(f"s_add_u32 s30, s30, {4*US}")
    srd(a, 48, 4, 0, 2048*1280)
    srd(a, 52, 8, WS_SM, SZ_SM)
    srd(a, 64, 10, 0, 2048*1280)
    a(f"""
    v_mul_u32_u24 v6, 1280, v4
    v_lshl_add_u32 v6, v3, 3, v6
    s_mul_i32 s31, s27, 96
    s_add_u32 s31, s31, s25
    v_lshlrev_b32 v7, 2, v4
    s_mov_b32 s32, {SM_G}
    buffer_load_dword v{T}, v7, s[52:55], s32 offen
    """)
    for i in range(3):
        a(f"buffer_load_dwordx2 {vr(XV+2*i,2)}, v6, s[48:51], s31 offen offset:{32*i}")
    a(f"""
    v_lshlrev_b32 v8, 3, v0
    v_mov_b32 v10, 0
    v_mov_b32 v11, 0
    s_mov_b32 exec_hi, 0xff
    ds_write_b64 v8, v[10:11] offset:{K3_YB+8*320}
    s_mov_b64 exec, -1
    v_mov_b32 v9, 8
    s_waitcnt lgkmcnt(0)
    """)
    for t in range(8):
        a(f"""
        s_andn2_b32 s33, 0xffff, s{56+t}
        s_cmp_eq_u32 s23, {t}
        s_cselect_b32 s34, s{56+t}, s34
        v_cmp_ne_u32 vcc, s33, v4
        v_cndmask_b32 v9, {t}, v9, vcc
        """)
    a(f"""
    v_mul_u32_u24 v9, 320, v9
    v_lshl_add_u32 v9, v3, 4, v9
    s_mul_i32 s33, s27, 192
    v_add_u32 v9, s33, v9
    s_andn2_b32 s33, 0xffff, s34
    s_sub_u32 s33, s33, s28
    s_cmp_ge_u32 s33, 64
    s_cbranch_scc1 K3_NOY
    s_mul_i32 s33, s23, 2560
    s_lshl_b32 s35, s25, 1
    s_add_u32 s33, s33, s35
    s_add_u32 s33, s33, {SM_YP}
    s_mov_b32 exec_hi, 0xff
    """)
    YT = ACC
    for half in range(2):
        for p in range(12):
            a(f"buffer_load_dwordx2 {vr(YT+2*p,2)}, v8, s[52:55], s33 offen")
            a(f"s_add_u32 s33, s33, {8*2560}")
        a("s_waitcnt vmcnt(0)")
        for p in range(12): a(f"v_pk_add_f32 v[10:11], v[10:11], {vr(YT+2*p,2)}")
    a(f"""
    s_ashr_i32 s35, s34, 31
    s_not_b32 s35, s35
    s_or_b32 s35, s35, 0x80000000
    s_xor_b32 s35, s35, s34
    s_and_b32 s35, s35, 0xffff0000
    v_mov_b32 v12, s35
    s_mov_b32 s36, {f32(-LOG2E)}
    """)
    sigmoid(a, 12, 12, 36); rnd_bf16(a, 12, 12)
    rnd_bf16(a, 10, 10); rnd_bf16(a, 11, 11)
    a("v_mul_f32 v10, v10, v12\nv_mul_f32 v11, v11, v12")
    rnd_bf16(a, 10, 10); rnd_bf16(a, 11, 11)
    a(f"""
    s_mul_i32 s33, s23, 320
    v_add_u32 v8, s33, v8
    ds_write_b64 v8, v[10:11] offset:{K3_YB}
    s_mov_b64 exec, -1
    """)
    a.label("K3_NOY")
    a(f"""
    ; wo tr address: row = 320kh + 4g + i/4 ; col bytes = (i%4)*8
    v_bfe_u32 v12, v0, 2, 2
    v_lshl_add_u32 v12, v3, 2, v12
    v_mul_u32_u24 v12, 160, v12
    v_and_b32 v13, 3, v0
    v_lshl_add_u32 v12, v13, 3, v12
    s_mul_i32 s33, s27, {320*160}
    s_add_u32 s33, s33, {K3_WO}
    v_add_u32 v12, s33, v12
    s_mul_i32 s33, s24, 5120
    s_add_u32 s33, s33, {K3_RED}
    v_lshl_add_u32 v13, v0, 4, s33
    s_waitcnt vmcnt(0) lgkmcnt(0)
    s_barrier
    """)
    seq = [(s_, cg) for s_ in range(10) for cg in range(5)]
    def rd(n):
        s_, cg = seq[n]; f = WF + 4*(n % 6)
        for t in range(2):
            a(f"ds_read_b64_tr_b16 {vr(f+2*t,2)}, v12 offset:{(32*s_+16*t)*160+32*cg}")
    AH = 5
    for n in range(AH): rd(n)
    for n in range(50):
        s_, cg = seq[n]; f = WF + 4*(n % 6)
        rem = min(50, n+AH) - n - 1
        a(f"s_waitcnt lgkmcnt({2*rem})")
        c = "0" if s_ == 0 else vr(ACC+4*cg,4)
        a(f"v_mfma_f32_16x16x32_bf16 {vr(ACC+4*cg,4)}, {vr(f,4)}, {vr(OF+4*s_,4)}, {c}")
        if n+AH < 50: rd(n+AH)
    a("s_nop 7\ns_cmp_eq_u32 s27, 0\ns_cbranch_scc1 K3_H0")
    def fin(mine, other, lab):
        for cg in other: a(f"ds_write_b128 v13, {vr(ACC+4*cg,4)} offset:{1024*cg}")
        a("s_waitcnt lgkmcnt(0)\ns_barrier")
        for i, cg in enumerate(mine):
            a(f"ds_read_b128 {vr(OF+4*i,4)}, v13 offset:{1024*cg}")
            a(f"ds_read_b128 {vr(OF+12+4*i,4)}, v9 offset:{K3_YB+64*i}")
        a(f"v_sub_f32 v{T+1}, 1.0, v{T}"); rnd_bf16(a, T+1, T+1)
        a("s_waitcnt lgkmcnt(0)")
        for i, cg in enumerate(mine):
            A_ = ACC+4*cg; Y = OF+12+4*i; X = XV+2*i; t = WF
            for e in range(4): a(f"v_add_f32 v{A_+e}, v{A_+e}, v{OF+4*i+e}")
            a(f"v_cvt_pk_bf16_f32 v{t}, v{A_}, v{A_+1}\nv_cvt_pk_bf16_f32 v{t+1}, v{A_+2}, v{A_+3}")
            def unpack(d, s):
                a(f"v_lshlrev_b32 v{d}, 16, v{s}\nv_and_b32 v{d+1}, 0xffff0000, v{s}")
                a(f"v_lshlrev_b32 v{d+2}, 16, v{s+1}\nv_and_b32 v{d+3}, 0xffff0000, v{s+1}")
            def rnd4(r):
                a(f"v_cvt_pk_bf16_f32 v{t}, v{r}, v{r+1}\nv_cvt_pk_bf16_f32 v{t+1}, v{r+2}, v{r+3}")
                unpack(r, t)
            unpack(A_, t)
            for e in range(4): a(f"v_mul_f32 v{A_+e}, v{A_+e}, v{T}")
            rnd4(A_)
            unpack(t+4, X)
            for e in range(4): a(f"v_add_f32 v{Y+e}, v{Y+e}, v{t+4+e}")
            rnd4(Y)
            for e in range(4): a(f"v_mul_f32 v{Y+e}, v{Y+e}, v{T+1}")
            rnd4(Y)
            for e in range(4): a(f"v_add_f32 v{A_+e}, v{A_+e}, v{Y+e}")
            o = t+8+2*i
            a(f"v_cvt_pk_bf16_f32 v{o}, v{A_}, v{A_+1}\nv_cvt_pk_bf16_f32 v{o+1}, v{A_+2}, v{A_+3}")
            a(f"buffer_store_dwordx2 {vr(o,2)}, v6, s[64:67], s31 offen offset:{32*i}")
        a("s_endpgm")
    fin([3,4],[0,1,2],"h1")
    a.label("K3_H0")
    fin([0,1,2],[3,4],"h0")
    a.label("K3_END")
    a("s_endpgm")
    return nm, 112

HEADER = open("cdna_kernels/%s.s.ref" % NAME).read().split("; Override launch geometry")[0]

def build():
    a = Asm()
    ks = [gen_k1(a), gen_k2(a), gen_k3(a)]
    launches = [("qkv_kernel",256,512,K1_LDS),("attn_kernel",256+NMOE,512,K2_LDS),("oproj_kernel",256,512,K3_LDS)]
    out = HEADER
    for (n,g,b,l) in launches: out += f"; @launch kernel={n} grid=({g},1,1) block=({b},1,1) lds={l}\n"
    out += '.amdgcn_target "amdgcn-amd-amdhsa--gfx950"\n'
    out += a.text()
    for (n,v) in ks: out += kd(n, v)
    return out

if __name__ == "__main__":
    p = sys.argv[1] if len(sys.argv) > 1 else "cdna_kernels/%s.s" % NAME
    open(p, "w").write(build())
    print("wrote", p)
```

```python
import sys, struct
from asmlib import *

NAME = "gated_mix__sliding_block__moe_arch_mod__prompt"
US = 16640
WS_QKV = 0;          SZ_QKV = 480*US
WS_O   = 0x800000;   SZ_O   = 160*US
WS_SM  = 0xB00000
SM_CAND = 0; SM_SEL = 0x400; SM_G = 0x1000; SM_YP = 0x10000
SZ_SM  = SM_YP + 24*8*640*4
def f32(x): return "0x%08x" % struct.unpack("<I", struct.pack("<f", x))[0]
QSCALE = (20 ** -0.5) * 1.4426950408889634
LOG2E = 1.4426950408889634
NEGBIG = -1.0e30

def srd(a, d, plo, off, size):
    if off:
        a(f"s_add_u32 s{d}, s{plo}, {off}")
        a(f"s_addc_u32 s{d+1}, s{plo+1}, 0")
    else:
        a(f"s_mov_b32 s{d}, s{plo}")
        a(f"s_mov_b32 s{d+1}, s{plo+1}")
    a(f"s_mov_b32 s{d+2}, {size}")
    a(f"s_mov_b32 s{d+3}, 0x20000")

def top8(a, va, vb, vt, sk):
    for r in range(8):
        a(f"v_max_u32 v{vt}, v{va}, v{vb}")
        for sh in (1,2,4,8):
            a(f"v_max_u32_dpp v{vt}, v{vt}, v{vt} row_shr:{sh} row_mask:0xf bank_mask:0xf")
        a(f"v_max_u32_dpp v{vt}, v{vt}, v{vt} row_bcast:15 row_mask:0xa bank_mask:0xf")
        a(f"v_max_u32_dpp v{vt}, v{vt}, v{vt} row_bcast:31 row_mask:0xc bank_mask:0xf")
        a(f"v_readlane_b32 s{sk+r}, v{vt}, 63")
        if r < 7:
            a(f"v_cmp_ne_u32 vcc, s{sk+r}, v{va}")
            a(f"v_cndmask_b32 v{va}, 0, v{va}, vcc")
            a(f"v_cmp_ne_u32 vcc, s{sk+r}, v{vb}")
            a(f"v_cndmask_b32 v{vb}, 0, v{vb}, vcc")

def sigmoid(a, vd, vs, slog):
    a(f"v_mul_f32 v{vd}, s{slog}, v{vs}")
    a(f"v_exp_f32 v{vd}, v{vd}")
    a(f"v_add_f32 v{vd}, 1.0, v{vd}")
    a(f"v_rcp_f32 v{vd}, v{vd}")

def rnd_bf16(a, vd, vs):
    a(f"v_cvt_pk_bf16_f32 v{vd}, v{vs}, v{vs}")
    a(f"v_and_b32 v{vd}, 0xffff0000, v{vd}")

def kd(name, vgpr, sgpr=96):
    acc = (vgpr+3)//4*4
    return f""".section .rodata,"a"
.p2align 6
.amdhsa_kernel {name}
  .amdhsa_next_free_vgpr {vgpr}
  .amdhsa_next_free_sgpr {sgpr}
  .amdhsa_accum_offset {acc}
  .amdhsa_group_segment_fixed_size 0
  .amdhsa_kernarg_size 96
  .amdhsa_user_sgpr_count 2
  .amdhsa_user_sgpr_kernarg_segment_ptr 1
  .amdhsa_system_sgpr_workgroup_id_x 1
.end_amdhsa_kernel
"""

STAMP = False
DELTA = 0.0
WS_ST = 0xC00000
KIDX = [0]
def khead(a, name):
    a(f".text\n.globl {name}\n.p2align 8\n.type {name},@function")
    a.label(name)
    if STAMP:
        a("s_memrealtime s[90:91]\ns_mov_b32 s94, 0\ns_mov_b32 s95, 0")
def mark(a, i):
    if STAMP:
        a(f"s_memrealtime s[92:93]\ns_waitcnt lgkmcnt(0)\ns_mov_b32 s{94+i}, s92")
def endk(a):
    if STAMP:
        a(f"""s_waitcnt vmcnt(0)
        s_memrealtime s[92:93]
        s_mov_b64 exec, 1
        s_lshl_b32 s88, s2, 3
        s_add_u32 s88, s88, s89
        s_lshl_b32 s88, s88, 4
        s_add_u32 s88, s88, {WS_ST + KIDX[0]*0x10000}
        v_mov_b32 v1, s88
        s_waitcnt lgkmcnt(0)
        v_mov_b32 v4, s90
        v_mov_b32 v5, s92
        v_mov_b32 v6, s94
        v_mov_b32 v7, s95
        global_store_dwordx4 v1, v[4:7], s[8:9]""")
    a("s_endpgm")

K1_D = 4
K1_LDS = K1_D*32768
def gen_k1(a):
    nm = "qkv_kernel"; KIDX[0]=0; khead(a, nm)
    D = K1_D
    a(f"""
    s_load_dwordx4 s[4:7], s[0:1], 0
    s_load_dwordx2 s[8:9], s[0:1], 88
    s_load_dwordx2 s[10:11], s[0:1], 32
    s_load_dwordx2 s[12:13], s[0:1], 64
    s_cmp_ge_u32 s2, 256
    s_cbranch_scc1 K1_END
    s_and_b32 s20, s2, 7
    s_lshr_b32 s21, s2, 3
    s_and_b32 s22, s21, 1
    s_lshl_b32 s20, s20, 1
    s_add_u32 s20, s20, s22          ; m tile
    s_lshr_b32 s21, s21, 1           ; n tile
    v_lshrrev_b32 v1, 6, v0
    v_and_b32 v0, 63, v0
    v_readfirstlane_b32 s23, v1      ; wave
    v_readfirstlane_b32 s89, v1
    s_waitcnt lgkmcnt(0)
    """)
    srd(a, 40, 4, 0, 2048*1280)
    a("s_cmp_eq_u32 s21, 15\ns_cbranch_scc1 K1_R")
    a("s_cmp_lt_u32 s23, 4\ns_cbranch_scc1 K1_C")
    srd(a, 44, 6, 0, 640*3840)
    a(f"""
    s_sub_u32 s23, s23, 4
    v_lshrrev_b32 v1, 3, v0          ; l/8
    v_lshrrev_b32 v2, 4, v0          ; l/16
    v_and_b32 v3, 7, v0
    v_xor_b32 v3, v3, v2
    s_lshl_b32 s24, s20, 7
    s_lshl_b32 s25, s23, 5
    s_add_u32 s24, s24, s25
    v_add_u32 v1, s24, v1
    v_mul_u32_u24 v1, 1280, v1
    v_lshl_add_u32 v4, v3, 4, v1     ; vA0
    v_xor_b32 v5, 64, v4             ; vA1
    v_and_b32 v3, 15, v0
    v_lshlrev_b32 v6, 2, v2
    v_xor_b32 v3, v3, v6
    s_lshl_b32 s25, s23, 4
    v_add_u32 v2, s25, v2
    v_mul_u32_u24 v2, 3840, v2
    v_lshl_add_u32 v6, v3, 4, v2
    s_lshl_b32 s25, s21, 8
    v_add_u32 v6, s25, v6            ; vB
    s_lshl_b32 s29, s23, 12
    s_mul_i32 s30, s20, 3
    s_add_u32 s30, s30, s21          ; rotation 0..59
    s_mul_i32 s31, s30, 26
    s_lshr_b32 s31, s31, 8           ; /10
    s_mul_i32 s31, s31, 10
    s_sub_u32 s30, s30, s31
    """)
    def issue(p):
        slot = p % D
        a(f"s_lshl_b32 s32, s30, 7\ns_mul_i32 s33, s30, {64*3840}")
        a(f"s_add_u32 s30, s30, 1\ns_cmp_eq_u32 s30, 10\ns_cselect_b32 s30, 0, s30")
        for i in range(4):
            a(f"s_add_u32 m0, s29, {slot*32768 + i*1024}")
            if i: a(f"s_add_u32 s32, s32, {8*1280}")
            a(f"buffer_load_dwordx4 v{4+(i&1)}, s[40:43], s32 offen lds")
            a(f"s_add_u32 m0, s29, {slot*32768 + 16384 + i*1024}")
            if i: a(f"s_add_u32 s33, s33, {4*3840}")
            a(f"buffer_load_dwordx4 v6, s[44:47], s33 offen lds")
    for p in range(D): issue(p)
    issued = D
    for s in range(10):
        a(f"s_waitcnt vmcnt({8*(issued-s-1)})\ns_barrier")
        if s >= 1 and issued < 10: issue(issued); issued += 1
    endk(a)
    a.label("K1_C")
    srd(a, 48, 8, WS_QKV, SZ_QKV)
    XA=2; WB=10; ST=14; ACC=16; FR=80
    a(f"""
    s_and_b32 s24, s23, 1            ; wm
    s_lshr_b32 s25, s23, 1           ; wn
    v_and_b32 v1, 31, v0             ; l%32
    v_lshrrev_b32 v14, 5, v0         ; hh
    v_bfe_u32 v15, v0, 1, 3
    v_xor_b32 v15, v15, v14
    v_lshlrev_b32 v15, 4, v15
    v_lshl_add_u32 v{XA}, v1, 7, v15
    s_lshl_b32 s26, s24, 13
    v_add_u32 v{XA}, s26, v{XA}
    v_xor_b32 v{XA+1}, 32, v{XA}
    v_xor_b32 v{XA+2}, 64, v{XA}
    v_xor_b32 v{XA+3}, 96, v{XA}
    """)
    for k in range(4): a(f"v_add_u32 v{XA+4+k}, 0x10000, v{XA+k}")
    a(f"""
    v_bfe_u32 v15, v0, 2, 2          ; i/4
    v_lshl_add_u32 v{WB}, v14, 3, v15 ; k_local
    v_lshlrev_b32 v{WB}, 8, v{WB}
    s_lshl_b32 s26, s25, 1
    v_xor_b32 v15, s26, v15          ; cb ^ (i/4)
    v_lshl_add_u32 v{WB}, v15, 6, v{WB}
    v_bfe_u32 v15, v0, 4, 1          ; colhalf
    v_lshl_add_u32 v{WB}, v15, 5, v{WB}
    v_and_b32 v15, 3, v0
    v_lshl_add_u32 v{WB}, v15, 3, v{WB}
    v_add_u32 v{WB}, 16384, v{WB}
    v_xor_b32 v{WB+1}, 64, v{WB}
    v_add_u32 v{WB+2}, 0x10000, v{WB}
    v_add_u32 v{WB+3}, 0x10000, v{WB+1}
    ; store voffset: hh*US + (128m + 64wm + l%32)*8 ; unit base (32n+16wn)*US in s27
    s_mov_b32 s26, {US}
    v_mul_lo_u32 v{ST}, s26, v14
    v_lshl_add_u32 v{ST}, v1, 3, v{ST}
    s_lshl_b32 s26, s20, 10
    s_lshl_b32 s27, s24, 9
    s_add_u32 s26, s26, s27
    v_add_u32 v{ST}, s26, v{ST}
    s_lshl_b32 s27, s21, 1
    s_add_u32 s27, s27, s25
    s_mul_i32 s27, s27, {16*US}
    """)
    def X(buf, rb): return FR + buf*16 + rb*4
    def W(buf, c): return FR + buf*16 + 8 + c*4
    def acc(c, rb): return ACC + (c*2+rb)*16
    def reads(t):
        s, ks = divmod(t, 4); slot = s % D; buf = t & 1
        hi = slot >= 2; so = (slot & 1)*32768
        for rb in range(2):
            a(f"ds_read_b128 {vr(X(buf,rb),4)}, v{XA+ks+(4 if hi else 0)} offset:{so+rb*4096}")
        for c in range(2):
            for tt in range(2):
                a(f"ds_read_b64_tr_b16 {vr(W(buf,c)+2*tt,2)}, v{WB+c+(2 if hi else 0)} offset:{so+(16*ks+4*tt)*256}")
    a("s_barrier"); mark(a,0); reads(0)
    for t in range(40):
        if t+1 < 40:
            if (t+1) % 4 == 0:
                a("s_waitcnt lgkmcnt(0)\ns_barrier"); reads(t+1)
            else:
                reads(t+1); a("s_waitcnt lgkmcnt(6)")
        else:
            a("s_waitcnt lgkmcnt(0)")
        buf = t & 1
        for c in range(2):
            for rb in range(2):
                cop = "0" if t == 0 else vr(acc(c,rb),16)
                a(f"v_mfma_f32_32x32x16_bf16 {vr(acc(c,rb),16)}, {vr(W(buf,c),4)}, {vr(X(buf,rb),4)}, {cop}")
    mark(a,1)
    a(f"s_nop 7\ns_nop 7\ns_cmp_ge_u32 s21, 5\ns_cbranch_scc1 K1_NOSC")
    a(f"s_mov_b32 s34, {f32(QSCALE)}\ns_mov_b32 s35, s34")
    for i in range(32): a(f"v_pk_mul_f32 {vr(ACC+2*i,2)}, {vr(ACC+2*i,2)}, s[34:35]")
    a.label("K1_NOSC")
    k = 0
    for c in range(2):
        for q in range(4):
            a(f"s_add_u32 s28, s27, {(8*c+2*q)*US}")
            for rb in range(2):
                b = acc(c,rb)+4*q; d = FR + 2*(k % 16); k += 1
                a(f"v_cvt_pk_bf16_f32 v{d}, v{b}, v{b+1}\nv_cvt_pk_bf16_f32 v{d+1}, v{b+2}, v{b+3}")
                a(f"buffer_store_dwordx2 {vr(d,2)}, v{ST}, s[48:51], s28 offen offset:{rb*256}")
    endk(a)
    a.label("K1_R")
    srd(a, 48, 8, WS_SM, SZ_SM)
    WR=8; WG=28; XR=48
    a(f"""
    v_and_b32 v1, 15, v0             ; j
    v_lshrrev_b32 v2, 4, v0          ; l/16
    v_lshlrev_b32 v3, 4, v1
    s_lshl_b32 s24, s20, 7
    s_lshl_b32 s25, s23, 4
    s_add_u32 s24, s24, s25
    v_add_u32 v4, s24, v2
    v_mul_u32_u24 v4, 1280, v4
    v_add_u32 v4, v4, v3
    """)
    for i in range(5):
        a(f"global_load_dwordx4 {vr(WR+4*i,4)}, v3, s[10:11] offset:{256*i}")
        a(f"global_load_dwordx4 {vr(WG+4*i,4)}, v3, s[12:13] offset:{256*i}")
    for p in range(4):
        a(f"s_mov_b32 s26, {p*5120}")
        for i in range(5):
            a(f"buffer_load_dwordx4 {vr(XR+20*p+4*i,4)}, v4, s[40:43], s26 offen offset:{256*i}")
    AR = [XR, XR+20, XR+40, XR+60]
    for p in range(4):
        a(f"s_waitcnt vmcnt({15-5*p})")
        a("v_mov_b32 v5, 0\nv_mov_b32 v6, 0")
        for i in range(20):
            a(f"v_dot2_f32_bf16 v5, v{XR+20*p+i}, v{WR+i}, v5")
            a(f"v_dot2_f32_bf16 v6, v{XR+20*p+i}, v{WG+i}, v6")
        for sh in (8,4,2,1):
            a(f"v_add_f32_dpp v5, v5, v5 row_ror:{sh} row_mask:0xf bank_mask:0xf")
            a(f"v_add_f32_dpp v6, v6, v6 row_ror:{sh} row_mask:0xf bank_mask:0xf")
        if p == 0:
            a(f"v_mov_b32 v{AR[0]}, v5\nv_mov_b32 v{AR[0]+1}, v6")
        else:
            a(f"v_cmp_eq_u32 vcc, {p}, v1")
            a(f"v_cndmask_b32 v{AR[0]}, v{AR[0]}, v5, vcc\nv_cndmask_b32 v{AR[0]+1}, v{AR[0]+1}, v6, vcc")
    R=AR[0]; G=AR[0]+1
    a(f"""
    v_lshl_add_u32 v2, v1, 2, v2
    v_add_u32 v7, s24, v2
    """)
    rnd_bf16(a, R, R)
    a(f"""
    v_ashrrev_i32 v5, 31, v{R}
    v_or_b32 v5, 0x80000000, v5
    v_xor_b32 v5, v5, v{R}
    v_and_b32 v5, 0xffff0000, v5
    v_sub_u32 v6, 0xffff, v7
    v_or_b32 v5, v5, v6              ; key
    s_mov_b32 s27, {f32(-LOG2E)}
    """)
    rnd_bf16(a, G, G)
    sigmoid(a, G, G, 27)
    rnd_bf16(a, G, G)
    a(f"""
    v_add_u32 v2, s25, v2
    v_lshlrev_b32 v2, 2, v2
    v_lshlrev_b32 v7, 2, v7
    v_cmp_gt_u32 vcc, 4, v1
    s_and_saveexec_b64 s[30:31], vcc
    ds_write_b32 v2, v5
    s_mov_b32 s26, {SM_G}
    buffer_store_dword v{G}, v7, s[48:51], s26 offen
    s_mov_b64 exec, s[30:31]
    s_waitcnt lgkmcnt(0)
    s_barrier
    s_cmp_lg_u32 s23, 0
    s_cbranch_scc1 K1_END2
    v_lshlrev_b32 v2, 3, v0
    ds_read_b64 v[4:5], v2
    s_waitcnt lgkmcnt(0)
    """)
    top8(a, 4, 5, 6, 56)
    for r in range(8): a(f"v_mov_b32 v{8+r}, s{56+r}")
    a(f"""
    s_lshl_b32 s26, s20, 5
    v_mov_b32 v2, s26
    v_cmp_eq_u32 vcc, 0, v0
    s_and_saveexec_b64 s[30:31], vcc
    buffer_store_dwordx4 v[8:11], v2, s[48:51], 0 offen offset:{SM_CAND}
    buffer_store_dwordx4 v[12:15], v2, s[48:51], 0 offen offset:{SM_CAND+16}
    """)
    a.label("K1_END2")
    endk(a)
    a.label("K1_END")
    a("s_endpgm")
    return nm, 128

NMOE = 48
UV = 4128; VB = 24576
K2_LDS = 76*1024
def gen_k2(a):
    nm = "attn_kernel"; KIDX[0]=1; khead(a, nm)
    a(f"""
    s_load_dwordx2 s[8:9], s[0:1], 88
    s_load_dwordx2 s[4:5], s[0:1], 0
    s_load_dwordx4 s[12:15], s[0:1], 40
    s_load_dwordx2 s[16:17], s[0:1], 56
    s_cmp_ge_u32 s2, {256+NMOE}
    s_cbranch_scc1 K2_END
    v_lshrrev_b32 v1, 6, v0
    v_lshlrev_b32 v2, 3, v0          ; tid*8
    v_and_b32 v0, 63, v0
    v_readfirstlane_b32 s23, v1      ; wave
    v_readfirstlane_b32 s89, v1
    s_cmp_lt_u32 s2, {NMOE}
    s_cbranch_scc1 K2_MOE
    s_sub_u32 s20, s2, {NMOE}
    s_lshr_b32 s21, s20, 3           ; h
    s_and_b32 s20, s20, 7            ; c
    s_waitcnt lgkmcnt(0)
    """)
    srd(a, 40, 8, WS_QKV, SZ_QKV)
    KA0=3; KA1=4; VA=5; Q0=6; Q1=10; KF=12; VF=24; S0=40; P=72; CM=80; O=96; T=112
    a(f"""
    s_and_b32 s24, s23, 3
    s_lshr_b32 s25, s23, 2
    s_lshl_b32 s26, s20, 1
    s_add_u32 s26, s26, s24
    s_lshl_b32 s27, s26, 10
    s_sub_u32 s27, s27, 2048
    s_cmp_lt_u32 s26, 2
    s_cselect_b32 s27, 0x40000000, s27
    v_lshl_add_u32 v{T}, v0, 4, s27
    s_mul_i32 s28, s21, {5*US}       ; 5h*US
    s_mul_i32 s29, s25, {160*US}
    s_add_u32 s29, s29, s28
    s_add_u32 s29, s29, {160*US}
    s_mul_i32 s30, s25, {VB}
    s_lshl_b32 s31, s24, 10
    s_add_u32 s30, s30, s31
    s_lshl_b32 s31, s25, 5
    s_add_u32 s31, s31, 4096
    """)
    for u in range(5):
        a(f"s_mov_b32 m0, s30")
        a(f"buffer_load_dwordx4 v{T}, s[40:43], s29 offen lds")
        if u < 4: a(f"s_add_u32 s30, s30, s31\ns_add_u32 s29, s29, {US}")
    a(f"""
    v_and_b32 v1, 31, v0             ; i = l%32
    v_lshrrev_b32 v{T+1}, 5, v0      ; hh
    s_mov_b32 s29, {2*US}
    v_mul_lo_u32 v{T+2}, s29, v{T+1}
    s_lshl_b32 s29, s20, 3
    s_add_u32 s29, s29, s23
    s_lshl_b32 s29, s29, 8           ; (8c+w)*32*8
    v_lshl_add_u32 v{T+3}, v1, 3, s29 ; token*8
    v_add_u32 v{T+2}, v{T+2}, v{T+3}
    s_add_u32 s29, s28, {US}
    s_add_u32 s30, s28, {4*US}
    buffer_load_dwordx2 {vr(Q0,2)}, v{T+2}, s[40:43], s28 offen
    buffer_load_dwordx2 {vr(Q0+2,2)}, v{T+2}, s[40:43], s29 offen
    buffer_load_dwordx2 {vr(Q1,2)}, v{T+3}, s[40:43], s30 offen
    """)
    a(f"""
    s_cmp_eq_u32 s20, 0
    s_cselect_b32 s29, 0xf149, 0
    s_cmp_lt_u32 s23, 4
    s_cselect_b32 s29, s29, 0
    v_mov_b32 v{S0}, s29
    v_mov_b32 v{S0+1}, 0
    v_mov_b32 v{S0+2}, 0x3f803f80
    v_mov_b32 v{S0+3}, 0x3f803f80
    ds_write_b64 v2, {vr(S0,2)} offset:{5*4096}
    ds_write_b64 v2, {vr(S0+2,2)} offset:{VB+5*UV}
    ; addresses
    s_lshl_b32 s29, s23, 8           ; w*32*8
    v_lshl_add_u32 v{KA1}, v1, 3, s29
    v_lshl_add_u32 v{KA0}, v{T+1}, 13, v{KA1}
    v_lshl_add_u32 v{KA1}, v{T+1}, 12, v{KA1}
    v_bfe_u32 v{VA}, v0, 4, 1        ; dhalf
    v_and_b32 v{T+4}, 3, v0
    v_lshl_add_u32 v{VA}, v{VA}, 2, v{T+4}
    v_min_u32 v{VA}, 5, v{VA}
    v_mul_u32_u24 v{VA}, {UV}, v{VA}
    v_bfe_u32 v{T+4}, v0, 2, 2       ; r
    v_lshl_add_u32 v{T+4}, v{T+1}, 2, v{T+4}
    v_lshl_add_u32 v{VA}, v{T+4}, 3, v{VA}
    v_add_u32 v{VA}, s29, v{VA}
    ; masks
    v_lshlrev_b32 v{T+4}, 2, v{T+1}
    v_sub_u32 v{T+4}, v1, v{T+4}     ; i-4hh
    v_mov_b32 v{T+5}, {f32(NEGBIG)}
    """)
    MK = 56
    for r in range(16):
        a(f"v_cmp_le_i32 {sr(MK+2*r,2)}, {8*(r//4)+r%4}, v{T+4}")
    srd(a, 44, 8, WS_O, SZ_O)
    a(f"""
    v_cmp_eq_u32 vcc, 0, v{T+1}
    v_mov_b32 v{T+6}, 0x3f80
    s_waitcnt vmcnt(0)
    v_cndmask_b32 v{Q1}, v{T+6}, v{Q1}, vcc
    v_cndmask_b32 v{Q1+1}, 0, v{Q1+1}, vcc
    s_waitcnt lgkmcnt(0)
    s_barrier
    """)
    mark(a,0)
    NEG = T+5; M = T+6
    def Sb(u): return S0 + 16*(u & 1)
    def Kb(u): return KF + 6*(u & 1)
    def Vb(u): return VF + 8*(u & 1)
    def kreads(u):
        b = u % 9
        a(f"ds_read_b64 {vr(Kb(u),2)}, v{KA0} offset:{b*256}")
        a(f"ds_read_b64 {vr(Kb(u)+2,2)}, v{KA0} offset:{4096+b*256}")
        a(f"ds_read_b64 {vr(Kb(u)+4,2)}, v{KA1} offset:{16384+b*256}")
    def vreads(u):
        b = u % 9
        for j in range(4):
            a(f"ds_read_b64_tr_b16 {vr(Vb(u)+2*j,2)}, v{VA} offset:{VB+b*256+j*64}")
    def maskinit(u):
        b = u % 9; good = "0" if u < 9 else f"v{CM}"
        for r in range(16):
            if b == 8: a(f"v_cndmask_b32 v{Sb(u)+r}, v{NEG}, {good}, {sr(MK+2*r,2)}")
            else:      a(f"v_cndmask_b32 v{Sb(u)+r}, {good}, v{NEG}, {sr(MK+2*r,2)}")
    def qk0(u):
        b = u % 9
        c = vr(Sb(u),16) if b in (0,8) else ("0" if u < 9 else vr(CM,16))
        return f"v_mfma_f32_32x32x16_bf16 {vr(Sb(u),16)}, {vr(Kb(u),4)}, {vr(Q0,4)}, {c}"
    def qk1(u):
        return f"v_mfma_f32_32x32x8_bf16 {vr(Sb(u),16)}, {vr(Kb(u)+4,2)}, {vr(Q1,2)}, {vr(Sb(u),16)}"
    kreads(0); kreads(1); maskinit(0)
    a(f"v_mov_b32 v{M}, v{NEG}")
    a("s_waitcnt lgkmcnt(3)"); a(qk0(0)); a(qk1(0))
    for u in range(9):
        if u < 8:
            if u+1 == 8: maskinit(8)
            a("s_waitcnt lgkmcnt(0)")
            a(qk0(u+1)); a(qk1(u+1))
        kreads(u+2)
        if u == 8: vreads(9)
        for r in range(8):
            a(f"v_max3_f32 v{M}, v{Sb(u)+2*r}, v{Sb(u)+2*r+1}, v{M}")
    a(f"""
    v_mov_b32 v{T+7}, v{M}
    v_permlane32_swap_b32 v{M}, v{T+7}
    v_max_f32 v{M}, v{M}, v{T+7}
    """)
    for r in range(16): a(f"v_sub_f32 v{CM+r}, 0, v{M}")
    maskinit(9)
    a("s_waitcnt lgkmcnt(7)"); a(qk0(9)); a(qk1(9))
    for u in range(9, 18):
        S = Sb(u); last = (u == 17)
        ex = [f"v_exp_f32 v{S+r}, v{S+r}" for r in range(16)]
        cv = [f"v_cvt_pk_bf16_f32 v{P+r}, v{S+2*r}, v{S+2*r+1}" for r in range(8)]
        if not last:
            if u+1 == 17: maskinit(17)
            a("s_waitcnt lgkmcnt(4)")
            a(qk0(u+1))
        for r in range(4): a(ex[r])
        if not last: a(qk1(u+1))
        if u+2 < 18: kreads(u+2)
        if not last: vreads(u+1)
        for r in range(4, 9): a(ex[r])
        for r in range(4): a(cv[r])
        for r in range(9, 12): a(ex[r])
        nout = (3 if u+2 < 18 else 0) + (0 if last else 4)
        a(f"s_waitcnt lgkmcnt({nout})")
        oc = "0" if u == 9 else vr(O,16)
        a(f"v_mfma_f32_32x32x16_bf16 {vr(O,16)}, {vr(Vb(u),4)}, {vr(P,4)}, {oc}")
        for r in range(12, 16): a(ex[r])
        for r in range(4, 8): a(cv[r])
        a(f"v_mfma_f32_32x32x16_bf16 {vr(O,16)}, {vr(Vb(u)+4,4)}, {vr(P+4,4)}, {vr(O,16)}")
    mark(a,1)
    a(f"""
    s_mov_b32 s29, {US}
    v_mul_lo_u32 v{T+2}, s29, v{T+1}
    v_add_u32 v{T+2}, v{T+2}, v{T+3}
    v_lshl_or_b32 v{T+3}, v{T+1}, 30, v{T+3}
    s_add_u32 s29, s28, {2*US}
    v_rcp_f32 v{T}, v{O+12}
    """)
    for r in range(12): a(f"v_mul_f32 v{O+r}, v{O+r}, v{T}")
    for r in range(6): a(f"v_cvt_pk_bf16_f32 v{P+r}, v{O+2*r}, v{O+2*r+1}")
    a(f"""
    buffer_store_dwordx2 {vr(P,2)}, v{T+2}, s[44:47], s28 offen
    buffer_store_dwordx2 {vr(P+2,2)}, v{T+2}, s[44:47], s29 offen
    buffer_store_dwordx2 {vr(P+4,2)}, v{T+3}, s[44:47], s30 offen
    """)
    endk(a)
    a.label("K2_MOE")
    HB = 0; RED = 2048; WD = RED + 32768
    L=16; XF=96; AC=L
    a(f"""
    s_cmp_ge_u32 s2, 24
    s_cselect_b32 s21, 1, 0          ; half
    s_cselect_b32 s20, 24, 0
    s_sub_u32 s20, s2, s20
    s_waitcnt lgkmcnt(0)
    """)
    srd(a, 40, 8, WS_SM, SZ_SM)
    srd(a, 44, 16, 0, 1536*1280)
    srd(a, 48, 4, 0, 2048*1280)
    a(f"""
    v_lshlrev_b32 v1, 3, v0
    buffer_load_dwordx2 v[4:5], v1, s[40:43], 0 offen offset:{SM_CAND}
    v_bfe_u32 v1, v0, 3, 1           ; mat
    v_cmp_eq_u32 vcc, 0, v1
    v_mov_b32 v6, s14
    v_mov_b32 v7, s15
    v_mov_b32 v8, s12
    v_mov_b32 v9, s13
    v_cndmask_b32 v6, v6, v8, vcc
    v_cndmask_b32 v7, v7, v9, vcc
    v_lshrrev_b32 v3, 4, v0          ; g
    s_mul_i32 s24, s23, 80
    v_lshl_add_u32 v8, v3, 2, s24    ; 80w + 4g
    v_mul_u32_u24 v9, 3072, v8
    v_and_b32 v10, 7, v0             ; c
    v_lshl_add_u32 v9, v10, 4, v9
    s_lshl_b32 s25, s20, 7
    v_add_u32 v9, s25, v9
    v_add_co_u32 v6, vcc, v6, v9
    v_addc_co_u32 v7, vcc, 0, v7, vcc
    s_mov_b32 s26, {2*3072}
    s_mov_b32 s27, 0
    s_mov_b32 s28, {14*3072}
    s_mov_b32 s29, 0
    """)
    for b in range(5):
        for i in range(4):
            a(f"global_load_dwordx4 {vr(L+16*b+4*i,4)}, v[6:7], off offset:{(i&1)*3072}")
            if i == 1: a("v_lshl_add_u64 v[6:7], v[6:7], 0, s[26:27]")
            if i == 3 and b < 4: a("v_lshl_add_u64 v[6:7], v[6:7], 0, s[28:29]")
    a(f"""
    s_lshl_b32 s24, s20, 6
    s_lshl_b32 s25, s23, 3
    s_add_u32 s24, s24, s25
    s_mul_i32 s24, s24, 1280
    s_mul_i32 s25, s21, 640
    s_add_u32 s24, s24, s25          ; soffset
    s_mul_i32 s25, s23, 5120
    s_add_u32 s25, s25, {WD}
    """)
    for i in range(5):
        a(f"""
        v_add_u32 v11, {64*i}, v0
        v_mul_u32_u24 v12, 1639, v11
        v_lshrrev_b32 v12, 16, v12       ; row = L/40
        v_mul_u32_u24 v13, 40, v12
        v_sub_u32 v11, v11, v13          ; pos
        v_and_b32 v13, 6, v12
        v_xor_b32 v11, v11, v13          ; chunk
        v_mul_u32_u24 v12, 1280, v12
        v_lshl_add_u32 v11, v11, 4, v12
        s_add_u32 m0, s25, {1024*i}
        buffer_load_dwordx4 v11, s[44:47], s24 offen lds
        """)
    a("s_waitcnt vmcnt(25)")
    top8(a, 4, 5, 11, 56)
    mark(a,0)
    a(f"v_mov_b32 v4, s56")
    for r in range(1, 8):
        a(f"v_cmp_eq_u32 vcc, {r}, v10\nv_mov_b32 v5, s{56+r}\nv_cndmask_b32 v4, v4, v5, vcc")
    a(f"""
    v_and_b32 v5, 0xffff, v4
    v_sub_u32 v5, 0xffff, v5         ; idx
    v_mul_u32_u24 v5, 1280, v5
    v_lshl_add_u32 v5, v8, 1, v5     ; + (80w+4g)*2
    """)
    for b in range(5):
        a(f"buffer_load_dwordx2 {vr(XF+2*b,2)}, v5, s[48:51], 0 offen offset:{32*b}")
    a(f"""
    s_or_b32 s24, s2, s23
    s_cmp_lg_u32 s24, 0
    s_cbranch_scc1 K2_NOSEL
    v_lshlrev_b32 v11, 2, v0
    v_cmp_gt_u32 vcc, 8, v0
    s_and_saveexec_b64 s[30:31], vcc
    buffer_store_dword v4, v11, s[40:43], 0 offen offset:{SM_SEL}
    s_mov_b64 exec, s[30:31]
    """)
    a.label("K2_NOSEL")
    a("s_mov_b32 s24, 0x05040100\ns_mov_b32 s25, 0x07060302\ns_waitcnt vmcnt(0)")
    mark(a,1)
    TP = 106
    ACC = [None]*8
    def perm(b, j, d):
        q = j//2; sel = 24 + (j & 1)
        a(f"v_perm_b32 v{d}, v{L+16*b+4+q}, v{L+16*b+q}, s{sel}")
        a(f"v_perm_b32 v{d+1}, v{L+16*b+12+q}, v{L+16*b+8+q}, s{sel}")
    for j in range(8): perm(0, j, TP+2*j)
    for j in range(4): ACC[j] = L+4*j
    for j in range(4): a(f"v_mfma_f32_16x16x16_bf16 {vr(ACC[j],4)}, {vr(XF,2)}, {vr(TP+2*j,2)}, 0")
    for j in range(4): perm(1, j, TP+2*j)
    for j in range(4): a(f"v_mfma_f32_16x16x16_bf16 {vr(ACC[j],4)}, {vr(XF+2,2)}, {vr(TP+2*j,2)}, {vr(ACC[j],4)}")
    for j in range(4, 8): perm(1, j, TP+2*(j-4))
    for j in range(4, 8): ACC[j] = L+16+4*(j-4)
    for j in range(4, 8): a(f"v_mfma_f32_16x16x16_bf16 {vr(ACC[j],4)}, {vr(XF,2)}, {vr(TP+2*j,2)}, 0")
    for j in range(4, 8): a(f"v_mfma_f32_16x16x16_bf16 {vr(ACC[j],4)}, {vr(XF+2,2)}, {vr(TP+2*(j-4),2)}, {vr(ACC[j],4)}")
    for b in range(2, 5):
        for j in range(8): perm(b, j, TP+2*j)
        for j in range(8): a(f"v_mfma_f32_16x16x16_bf16 {vr(ACC[j],4)}, {vr(XF+2*b,2)}, {vr(TP+2*j,2)}, {vr(ACC[j],4)}")
    a(f"""
    v_and_b32 v11, 15, v0
    v_lshlrev_b32 v11, 5, v11
    v_lshl_add_u32 v11, v3, 4, v11
    s_lshl_b32 s26, s23, 12
    v_add_u32 v11, s26, v11
    s_mov_b32 exec_hi, 0
    """)
    for j in range(8): a(f"ds_write_b128 v11, {vr(ACC[j],4)} offset:{RED+512*j}")
    a(f"""
    s_mov_b64 exec, -1
    s_lshl_b32 s26, s23, 9
    s_add_u32 s26, s26, {RED}
    v_lshl_add_u32 v11, v0, 2, s26
    s_waitcnt lgkmcnt(0)
    s_barrier
    """)
    for w in range(8): a(f"ds_read2st64_b32 {vr(48+2*w,2)}, v11 offset0:{16*w} offset1:{16*w+1}")
    a(f"s_mov_b32 s27, {f32(-LOG2E)}\ns_waitcnt lgkmcnt(0)")
    for w in range(1, 8): a(f"v_pk_add_f32 v[48:49], v[48:49], {vr(48+2*w,2)}")
    rnd_bf16(a, 48, 48); rnd_bf16(a, 49, 49)
    sigmoid(a, 50, 48, 27)
    a("v_mul_f32 v48, v48, v50"); rnd_bf16(a, 48, 48)
    a(f"""
    v_mul_f32 v48, v48, v49
    v_cvt_pk_bf16_f32 v48, v48, v48
    ; hbuf[t][f=8c+j], t = l%8, c = l/8, row stride 144
    v_mul_u32_u24 v11, 144, v10
    v_lshrrev_b32 v12, 3, v0
    v_lshl_add_u32 v12, v12, 4, v11
    s_lshl_b32 s26, s23, 1
    v_add_u32 v12, s26, v12
    ds_write_b16 v12, v48 offset:{HB}
    v_lshl_add_u32 v11, v3, 3, v11
    ; w_down tr address: row = 4g + i/4 ; chunk = 2cg + (i%4)/2 ; pos = chunk ^ (row & 6)
    v_bfe_u32 v12, v0, 2, 2
    v_lshl_add_u32 v12, v3, 2, v12   ; row
    v_and_b32 v13, 6, v12
    s_lshl_b32 s26, s23, 1
    v_xor_b32 v13, s26, v13
    v_lshlrev_b32 v13, 4, v13
    v_mul_u32_u24 v12, 640, v12
    v_add_u32 v12, v12, v13
    v_and_b32 v13, 3, v0
    v_lshl_add_u32 v12, v13, 3, v12
    v_add_u32 v12, {WD}, v12
    ; store offset: ((js*8+t)*640 + half*320 + 16w + 4g)*4 ; lanes with l%16>=8 out of range
    v_mul_u32_u24 v13, 2560, v10
    v_lshl_add_u32 v13, v3, 4, v13
    v_lshl_or_b32 v13, v1, 30, v13
    s_mul_i32 s26, s20, {8*2560}
    s_mul_i32 s28, s21, 1280
    s_add_u32 s26, s26, s28
    s_lshl_b32 s28, s23, 6
    s_add_u32 s26, s26, s28
    s_add_u32 s26, s26, {SM_YP}
    s_waitcnt lgkmcnt(0)
    s_barrier
    """)
    for s_ in range(2):
        for t in range(2):
            a(f"ds_read_b64 {vr(16+4*s_+2*t,2)}, v11 offset:{HB+64*s_+32*t}")
    for i in range(3):
        if i == 2: a("s_cmp_ge_u32 s23, 4\ns_cbranch_scc1 K2_END2")
        for s_ in range(2):
            for t in range(2):
                a(f"ds_read_b64_tr_b16 {vr(24+8*i+4*s_+2*t,2)}, v12 offset:{(32*s_+16*t)*640+256*i}")
        a("s_waitcnt lgkmcnt(0)")
        d = 48+4*i
        a(f"v_mfma_f32_16x16x32_bf16 {vr(d,4)}, {vr(24+8*i,4)}, v[16:19], 0")
        a(f"v_mfma_f32_16x16x32_bf16 {vr(d,4)}, {vr(24+8*i+4,4)}, v[20:23], {vr(d,4)}")
        a(f"buffer_store_dwordx4 {vr(d,4)}, v13, s[40:43], s26 offen offset:{512*i}")
    a.label("K2_END2")
    endk(a)
    a.label("K2_END")
    a("s_endpgm")
    return nm, 128

K3_YB = 0; K3_RED = 3072; K3_WO = K3_RED + 4*5*1024
K3_LDS = K3_WO + 640*160
def gen_k3(a):
    nm = "oproj_kernel"; KIDX[0]=2; khead(a, nm)
    a(f"""
    s_load_dwordx2 s[8:9], s[0:1], 88
    s_load_dwordx2 s[4:5], s[0:1], 0
    s_load_dwordx2 s[6:7], s[0:1], 16
    s_load_dwordx2 s[10:11], s[0:1], 72
    s_cmp_ge_u32 s2, 256
    s_cbranch_scc1 K3_END
    s_and_b32 s20, s2, 7
    s_lshr_b32 s21, s2, 3
    s_and_b32 s22, s21, 3
    s_lshl_b32 s20, s20, 2
    s_add_u32 s20, s20, s22          ; rb
    s_lshr_b32 s21, s21, 2           ; cb
    v_lshrrev_b32 v1, 6, v0
    v_and_b32 v0, 63, v0
    v_readfirstlane_b32 s23, v1
    v_readfirstlane_b32 s89, v1
    s_waitcnt lgkmcnt(0)
    s_add_u32 s12, s8, {WS_SM}
    s_addc_u32 s13, s9, 0
    s_load_dwordx8 s[56:63], s[12:13], {SM_SEL}
    """)
    srd(a, 40, 6, 0, 640*1280)
    srd(a, 44, 8, WS_O, SZ_O)
    OF=16; ACC=56; WF=76; XV=100; T=106
    a(f"""
    v_mul_u32_u24 v1, 26, v0
    v_lshrrev_b32 v1, 8, v1          ; l/10
    v_mul_u32_u24 v2, 10, v1
    v_sub_u32 v2, v0, v2
    v_mul_u32_u24 v1, 1280, v1
    v_lshl_add_u32 v1, v2, 4, v1
    s_mul_i32 s24, s23, {80*1280}
    s_mul_i32 s25, s21, 160
    s_add_u32 s24, s24, s25
    s_mul_i32 s26, s23, {80*160}
    s_mov_b32 exec_hi, 0x3ffff
    """)
    for i in range(16):
        a(f"s_add_u32 m0, s26, {K3_WO+800*i}")
        a(f"buffer_load_dwordx4 v1, s[40:43], s24 offen lds")
        if i < 15: a(f"s_add_u32 s24, s24, {5*1280}")
    a(f"""
    s_mov_b64 exec, -1
    s_and_b32 s24, s23, 3            ; tg
    s_lshr_b32 s27, s23, 2           ; kh
    v_and_b32 v2, 15, v0
    v_lshrrev_b32 v3, 4, v0          ; g
    s_lshl_b32 s28, s20, 6
    s_lshl_b32 s29, s24, 4
    s_add_u32 s29, s29, s28
    v_add_u32 v4, s29, v2
    v_mul_u32_u24 v5, {US}, v3
    v_lshl_add_u32 v5, v4, 3, v5
    s_mul_i32 s30, s27, {80*US}
    """)
    for s_ in range(10):
        for t in range(2):
            a(f"buffer_load_dwordx2 {vr(OF+4*s_+2*t,2)}, v5, s[44:47], s30 offen")
            if not (s_ == 9 and t == 1): a(f"s_add_u32 s30, s30, {4*US}")
    srd(a, 48, 4, 0, 2048*1280)
    srd(a, 52, 8, WS_SM, SZ_SM)
    srd(a, 64, 10, 0, 2048*1280)
    a(f"""
    v_mul_u32_u24 v6, 1280, v4
    v_lshl_add_u32 v6, v3, 3, v6
    s_mul_i32 s31, s27, 96
    s_add_u32 s31, s31, s25
    v_lshlrev_b32 v7, 2, v4
    s_mov_b32 s32, {SM_G}
    buffer_load_dword v{T}, v7, s[52:55], s32 offen
    """)
    for i in range(3):
        a(f"buffer_load_dwordx2 {vr(XV+2*i,2)}, v6, s[48:51], s31 offen offset:{32*i}")
    a(f"""
    v_lshlrev_b32 v8, 3, v0
    v_mov_b32 v10, 0
    v_mov_b32 v11, 0
    s_mov_b32 exec_hi, 0xff
    ds_write_b64 v8, v[10:11] offset:{K3_YB+8*320}
    s_mov_b64 exec, -1
    v_mov_b32 v9, 8
    s_waitcnt lgkmcnt(0)
    """)
    for t in range(8):
        a(f"""
        s_andn2_b32 s33, 0xffff, s{56+t}
        s_cmp_eq_u32 s23, {t}
        s_cselect_b32 s34, s{56+t}, s34
        v_cmp_ne_u32 vcc, s33, v4
        v_cndmask_b32 v9, {t}, v9, vcc
        """)
    a(f"""
    v_mul_u32_u24 v9, 320, v9
    v_lshl_add_u32 v9, v3, 4, v9
    s_mul_i32 s33, s27, 192
    v_add_u32 v9, s33, v9
    s_andn2_b32 s33, 0xffff, s34
    s_sub_u32 s33, s33, s28
    s_cmp_ge_u32 s33, 64
    s_cbranch_scc1 K3_NOY
    s_mul_i32 s33, s23, 2560
    s_lshl_b32 s35, s25, 1
    s_add_u32 s33, s33, s35
    s_add_u32 s33, s33, {SM_YP}
    s_mov_b32 exec_hi, 0xff
    """)
    YT = ACC
    for half in range(2):
        for p in range(12):
            a(f"buffer_load_dwordx2 {vr(YT+2*p,2)}, v8, s[52:55], s33 offen")
            a(f"s_add_u32 s33, s33, {8*2560}")
        a("s_waitcnt vmcnt(0)")
        for p in range(12): a(f"v_pk_add_f32 v[10:11], v[10:11], {vr(YT+2*p,2)}")
    a(f"""
    s_ashr_i32 s35, s34, 31
    s_not_b32 s35, s35
    s_or_b32 s35, s35, 0x80000000
    s_xor_b32 s35, s35, s34
    s_and_b32 s35, s35, 0xffff0000
    v_mov_b32 v12, s35
    s_mov_b32 s36, {f32(-LOG2E)}
    """)
    sigmoid(a, 12, 12, 36); rnd_bf16(a, 12, 12)
    rnd_bf16(a, 10, 10); rnd_bf16(a, 11, 11)
    a("v_mul_f32 v10, v10, v12\nv_mul_f32 v11, v11, v12")
    rnd_bf16(a, 10, 10); rnd_bf16(a, 11, 11)
    a(f"""
    s_mul_i32 s33, s23, 320
    v_add_u32 v8, s33, v8
    ds_write_b64 v8, v[10:11] offset:{K3_YB}
    s_mov_b64 exec, -1
    """)
    a.label("K3_NOY")
    a(f"""
    ; wo tr address: row = 320kh + 4g + i/4 ; col bytes = (i%4)*8
    v_bfe_u32 v12, v0, 2, 2
    v_lshl_add_u32 v12, v3, 2, v12
    v_mul_u32_u24 v12, 160, v12
    v_and_b32 v13, 3, v0
    v_lshl_add_u32 v12, v13, 3, v12
    s_mul_i32 s33, s27, {320*160}
    s_add_u32 s33, s33, {K3_WO}
    v_add_u32 v12, s33, v12
    s_mul_i32 s33, s24, 5120
    s_add_u32 s33, s33, {K3_RED}
    v_lshl_add_u32 v13, v0, 4, s33
    s_waitcnt vmcnt(0) lgkmcnt(0)
    s_barrier
    """)
    mark(a,0)
    seq = [(s_, cg) for s_ in range(10) for cg in range(5)]
    def rd(n):
        s_, cg = seq[n]; f = WF + 4*(n % 6)
        for t in range(2):
            a(f"ds_read_b64_tr_b16 {vr(f+2*t,2)}, v12 offset:{(32*s_+16*t)*160+32*cg}")
    AH = 5
    for n in range(AH): rd(n)
    for n in range(50):
        s_, cg = seq[n]; f = WF + 4*(n % 6)
        rem = min(50, n+AH) - n - 1
        a(f"s_waitcnt lgkmcnt({2*rem})")
        c = "0" if s_ == 0 else vr(ACC+4*cg,4)
        a(f"v_mfma_f32_16x16x32_bf16 {vr(ACC+4*cg,4)}, {vr(f,4)}, {vr(OF+4*s_,4)}, {c}")
        if n+AH < 50: rd(n+AH)
    mark(a,1)
    a("s_nop 7\ns_cmp_eq_u32 s27, 0\ns_cbranch_scc1 K3_H0")
    def fin(mine, other, lab):
        for cg in other: a(f"ds_write_b128 v13, {vr(ACC+4*cg,4)} offset:{1024*cg}")
        a("s_waitcnt lgkmcnt(0)\ns_barrier")
        for i, cg in enumerate(mine):
            a(f"ds_read_b128 {vr(OF+4*i,4)}, v13 offset:{1024*cg}")
            a(f"ds_read_b128 {vr(OF+12+4*i,4)}, v9 offset:{K3_YB+64*i}")
        a(f"v_sub_f32 v{T+1}, 1.0, v{T}"); rnd_bf16(a, T+1, T+1)
        a("s_waitcnt lgkmcnt(0)")
        for i, cg in enumerate(mine):
            A_ = ACC+4*cg; Y = OF+12+4*i; X = XV+2*i; t = WF
            for e in range(4): a(f"v_add_f32 v{A_+e}, v{A_+e}, v{OF+4*i+e}")
            a(f"v_cvt_pk_bf16_f32 v{t}, v{A_}, v{A_+1}\nv_cvt_pk_bf16_f32 v{t+1}, v{A_+2}, v{A_+3}")
            def unpack(d, s):
                a(f"v_lshlrev_b32 v{d}, 16, v{s}\nv_and_b32 v{d+1}, 0xffff0000, v{s}")
                a(f"v_lshlrev_b32 v{d+2}, 16, v{s+1}\nv_and_b32 v{d+3}, 0xffff0000, v{s+1}")
            def rnd4(r):
                a(f"v_cvt_pk_bf16_f32 v{t}, v{r}, v{r+1}\nv_cvt_pk_bf16_f32 v{t+1}, v{r+2}, v{r+3}")
                unpack(r, t)
            unpack(A_, t)
            for e in range(4): a(f"v_mul_f32 v{A_+e}, v{A_+e}, v{T}")
            rnd4(A_)
            unpack(t+4, X)
            for e in range(4): a(f"v_add_f32 v{Y+e}, v{Y+e}, v{t+4+e}")
            rnd4(Y)
            for e in range(4): a(f"v_mul_f32 v{Y+e}, v{Y+e}, v{T+1}")
            rnd4(Y)
            for e in range(4): a(f"v_add_f32 v{A_+e}, v{A_+e}, v{Y+e}")
            if DELTA:
                for e in range(4): a(f"v_add_f32 v{A_+e}, {f32(DELTA)}, v{A_+e}")
            o = t+8+2*i
            a(f"v_cvt_pk_bf16_f32 v{o}, v{A_}, v{A_+1}\nv_cvt_pk_bf16_f32 v{o+1}, v{A_+2}, v{A_+3}")
            a(f"buffer_store_dwordx2 {vr(o,2)}, v6, s[64:67], s31 offen offset:{32*i}")
        endk(a)
    fin([3,4],[0,1,2],"h1")
    a.label("K3_H0")
    fin([0,1,2],[3,4],"h0")
    a.label("K3_END")
    a("s_endpgm")
    return nm, 112

HEADER = open("cdna_kernels/%s.s.ref" % NAME).read().split("; Override launch geometry")[0]

def build():
    a = Asm()
    ks = [gen_k1(a), gen_k2(a), gen_k3(a)]
    launches = [("qkv_kernel",256,512,K1_LDS),("attn_kernel",256+NMOE,512,K2_LDS),("oproj_kernel",256,512,K3_LDS)]
    out = HEADER
    for (n,g,b,l) in launches: out += f"; @launch kernel={n} grid=({g},1,1) block=({b},1,1) lds={l}\n"
    out += '.amdgcn_target "amdgcn-amd-amdhsa--gfx950"\n'
    out += a.text()
    for (n,v) in ks: out += kd(n, v)
    return out

if __name__ == "__main__":
    p = sys.argv[1] if len(sys.argv) > 1 else "cdna_kernels/%s.s" % NAME
    for o in sys.argv[2:]:
        k, v = o.split("="); globals()[k] = eval(v)
    open(p, "w").write(build())
    print("wrote", p)
```

```python
import sys, struct
from asmlib import *

NAME = "gated_mix__sliding_block__moe_arch_mod__prompt"
US = 16640
WS_QKV = 0;          SZ_QKV = 480*US
WS_O   = 0x800000;   SZ_O   = 160*US
WS_SM  = 0xB00000
SM_CAND = 0; SM_SEL = 0x400; SM_G = 0x1000; SM_YP = 0x10000
SZ_SM  = SM_YP + 24*8*640*4
def f32(x): return "0x%08x" % struct.unpack("<I", struct.pack("<f", x))[0]
QSCALE = (20 ** -0.5) * 1.4426950408889634
LOG2E = 1.4426950408889634
NEGBIG = -1.0e30

def srd(a, d, plo, off, size):
    if off:
        a(f"s_add_u32 s{d}, s{plo}, {off}")
        a(f"s_addc_u32 s{d+1}, s{plo+1}, 0")
    else:
        a(f"s_mov_b32 s{d}, s{plo}")
        a(f"s_mov_b32 s{d+1}, s{plo+1}")
    a(f"s_mov_b32 s{d+2}, {size}")
    a(f"s_mov_b32 s{d+3}, 0x20000")

def top8(a, va, vb, vt, sk):
    for r in range(8):
        a(f"v_max_u32 v{vt}, v{va}, v{vb}")
        for sh in (1,2,4,8):
            a(f"v_max_u32_dpp v{vt}, v{vt}, v{vt} row_shr:{sh} row_mask:0xf bank_mask:0xf")
        a(f"v_max_u32_dpp v{vt}, v{vt}, v{vt} row_bcast:15 row_mask:0xa bank_mask:0xf")
        a(f"v_max_u32_dpp v{vt}, v{vt}, v{vt} row_bcast:31 row_mask:0xc bank_mask:0xf")
        a(f"v_readlane_b32 s{sk+r}, v{vt}, 63")
        if r < 7:
            a(f"v_cmp_ne_u32 vcc, s{sk+r}, v{va}")
            a(f"v_cndmask_b32 v{va}, 0, v{va}, vcc")
            a(f"v_cmp_ne_u32 vcc, s{sk+r}, v{vb}")
            a(f"v_cndmask_b32 v{vb}, 0, v{vb}, vcc")

def sigmoid(a, vd, vs, slog):
    a(f"v_mul_f32 v{vd}, s{slog}, v{vs}")
    a(f"v_exp_f32 v{vd}, v{vd}")
    a(f"v_add_f32 v{vd}, 1.0, v{vd}")
    a(f"v_rcp_f32 v{vd}, v{vd}")

def rnd_bf16(a, vd, vs):
    a(f"v_cvt_pk_bf16_f32 v{vd}, v{vs}, v{vs}")
    a(f"v_and_b32 v{vd}, 0xffff0000, v{vd}")

def kd(name, vgpr, sgpr=96):
    if STAMP: sgpr = 102
    acc = (vgpr+3)//4*4
    return f""".section .rodata,"a"
.p2align 6
.amdhsa_kernel {name}
  .amdhsa_next_free_vgpr {vgpr}
  .amdhsa_next_free_sgpr {sgpr}
  .amdhsa_accum_offset {acc}
  .amdhsa_group_segment_fixed_size 0
  .amdhsa_kernarg_size 96
  .amdhsa_user_sgpr_count 2
  .amdhsa_user_sgpr_kernarg_segment_ptr 1
  .amdhsa_system_sgpr_workgroup_id_x 1
.end_amdhsa_kernel
"""

STAMP = False
DELTA = 0.0
WS_ST = 0xC00000
KIDX = [0]
STV = [130, 127, 130]
def khead(a, name):
    a(f".text\n.globl {name}\n.p2align 8\n.type {name},@function")
    a.label(name)
    if STAMP:
        a(f"s_memrealtime s[90:91]\ns_memtime s[96:97]\nv_mov_b32 v{STV[KIDX[0]]}, 0")
def mark(a, i):
    if STAMP:
        a(f"s_memtime s[92:93]\ns_waitcnt lgkmcnt(0)\ns_sub_u32 s92, s92, s96\nv_writelane_b32 v{STV[KIDX[0]]}, s92, {4+i}")
def endk(a):
    if STAMP:
        V = STV[KIDX[0]]
        mark(a, 10)
        a("s_waitcnt vmcnt(0)")
        mark(a, 11)
        a(f"""s_memrealtime s[92:93]
        s_getreg_b32 s94, hwreg(HW_REG_HW_ID)
        s_getreg_b32 s95, hwreg(HW_REG_XCC_ID)
        s_mov_b64 exec, 0xffff
        s_lshl_b32 s88, s2, 3
        s_add_u32 s88, s88, s89
        s_lshl_b32 s88, s88, 6
        s_add_u32 s88, s88, {WS_ST + KIDX[0]*0x40000}
        v_mbcnt_lo_u32_b32 v1, -1, 0
        v_lshl_add_u32 v1, v1, 2, s88
        s_waitcnt lgkmcnt(0)
        v_writelane_b32 v{V}, s90, 0
        v_writelane_b32 v{V}, s92, 1
        v_writelane_b32 v{V}, s94, 2
        v_writelane_b32 v{V}, s95, 3
        global_store_dword v1, v{V}, s[8:9]""")
    a("s_endpgm")

K1_D = 4
ROT = 1
EXTRA = 0
ROTS = {0: "s_mov_b32 s30, 0",
        1: "s_mul_i32 s30, s20, 3\ns_add_u32 s30, s30, s21",
        5: "s_add_u32 s30, s20, s21\ns_and_b32 s30, s30, 1\ns_mul_i32 s30, s30, 5\ns_and_b32 s31, s2, 3\ns_add_u32 s30, s30, s31\ns_bfe_u32 s31, s2, 0x10002\ns_lshl_b32 s31, s31, 1\ns_add_u32 s30, s30, s31",
        7: "s_add_u32 s30, s20, s21\ns_and_b32 s30, s30, 3\ns_mul_i32 s30, s30, 5\ns_lshr_b32 s30, s30, 1\ns_and_b32 s31, s2, 1\ns_add_u32 s30, s30, s31"}
K1_LDS = K1_D*32768
def gen_k1(a):
    nm = "qkv_kernel"; KIDX[0]=0; khead(a, nm)
    D = K1_D
    a(f"""
    s_load_dwordx4 s[4:7], s[0:1], 0
    s_load_dwordx2 s[8:9], s[0:1], 88
    s_load_dwordx2 s[10:11], s[0:1], 32
    s_load_dwordx2 s[12:13], s[0:1], 64
    s_cmp_ge_u32 s2, 256
    s_cbranch_scc1 K1_END
    s_and_b32 s20, s2, 3
    s_bfe_u32 s22, s2, 0x20003
    s_lshl_b32 s20, s20, 2
    s_add_u32 s20, s20, s22
    s_bfe_u32 s22, s2, 0x10002
    s_lshl_b32 s22, s22, 3
    s_lshr_b32 s21, s2, 5
    s_add_u32 s21, s21, s22
    v_lshrrev_b32 v1, 6, v0
    v_and_b32 v0, 63, v0
    v_readfirstlane_b32 s23, v1      ; wave
    v_readfirstlane_b32 s89, v1
    s_waitcnt lgkmcnt(0)
    """)
    srd(a, 40, 4, 0, 2048*1280)
    a("s_cmp_eq_u32 s21, 15\ns_cbranch_scc1 K1_R")
    a("s_cmp_lt_u32 s23, 4\ns_cbranch_scc1 K1_C")
    srd(a, 44, 6, 0, 640*3840)
    a(f"""
    s_sub_u32 s23, s23, 4
    v_lshrrev_b32 v1, 3, v0          ; l/8
    v_lshrrev_b32 v2, 4, v0          ; l/16
    v_and_b32 v3, 7, v0
    v_xor_b32 v3, v3, v2
    s_lshl_b32 s24, s20, 7
    s_lshr_b32 s25, s23, 1
    s_lshl_b32 s25, s25, 6
    s_add_u32 s24, s24, s25
    s_and_b32 s25, s23, 1
    s_add_u32 s24, s24, s25
    v_lshl_add_u32 v1, v1, 1, s24
    v_mul_u32_u24 v1, 1280, v1
    v_lshl_add_u32 v4, v3, 4, v1     ; vA0
    v_xor_b32 v5, 64, v4             ; vA1
    v_and_b32 v3, 15, v0
    v_lshlrev_b32 v6, 2, v2
    v_xor_b32 v3, v3, v6
    s_lshl_b32 s25, s23, 4
    v_add_u32 v2, s25, v2
    v_mul_u32_u24 v2, 3840, v2
    v_lshl_add_u32 v6, v3, 4, v2
    s_lshl_b32 s25, s21, 8
    v_add_u32 v6, s25, v6            ; vB
    s_lshl_b32 s29, s23, 12
    {ROTS[ROT]}
    s_mul_i32 s31, s30, 26
    s_lshr_b32 s31, s31, 8           ; /10
    s_mul_i32 s31, s31, 10
    s_sub_u32 s30, s30, s31
    """)
    def issue(p):
        slot = p % D
        a(f"s_lshl_b32 s32, s30, 7\ns_mul_i32 s33, s30, {64*3840}")
        a(f"s_add_u32 s30, s30, 1\ns_cmp_eq_u32 s30, 10\ns_cselect_b32 s30, 0, s30")
        for i in range(4):
            a(f"s_add_u32 m0, s29, {slot*32768 + i*1024}")
            if i: a(f"s_add_u32 s32, s32, {16*1280}")
            a(f"buffer_load_dwordx4 v{4+(i&1)}, s[40:43], s32 offen lds")
            a(f"s_add_u32 m0, s29, {slot*32768 + 16384 + i*1024}")
            if i: a(f"s_add_u32 s33, s33, {4*3840}")
            a(f"buffer_load_dwordx4 v6, s[44:47], s33 offen lds")
    issue(0); issue(1)
    for s in range(10):
        a(f"s_waitcnt vmcnt({8 if s < 9 else 0})\ns_barrier")
        if s+2 < 10: issue(s+2)
    endk(a)
    a.label("K1_C")
    srd(a, 48, 8, WS_QKV, SZ_QKV)
    XA=2; WB=10; ST=14; ACC=16; FR=80
    a(f"""
    s_and_b32 s24, s23, 1            ; wm
    s_lshr_b32 s25, s23, 1           ; wn
    v_and_b32 v1, 31, v0             ; l%32
    v_lshrrev_b32 v14, 5, v0         ; hh
    v_bfe_u32 v15, v0, 1, 3
    v_xor_b32 v15, v15, v14
    v_lshlrev_b32 v15, 4, v15
    v_lshl_add_u32 v{XA}, v1, 7, v15
    s_lshl_b32 s26, s24, 13
    v_add_u32 v{XA}, s26, v{XA}
    v_xor_b32 v{XA+1}, 32, v{XA}
    v_xor_b32 v{XA+2}, 64, v{XA}
    v_xor_b32 v{XA+3}, 96, v{XA}
    """)
    for k in range(4): a(f"v_add_u32 v{XA+4+k}, 0x10000, v{XA+k}")
    a(f"""
    v_bfe_u32 v15, v0, 2, 2          ; i/4
    v_lshl_add_u32 v{WB}, v14, 3, v15 ; k_local
    v_lshlrev_b32 v{WB}, 8, v{WB}
    s_lshl_b32 s26, s25, 1
    v_xor_b32 v15, s26, v15          ; cb ^ (i/4)
    v_lshl_add_u32 v{WB}, v15, 6, v{WB}
    v_bfe_u32 v15, v0, 4, 1          ; colhalf
    v_lshl_add_u32 v{WB}, v15, 5, v{WB}
    v_and_b32 v15, 3, v0
    v_lshl_add_u32 v{WB}, v15, 3, v{WB}
    v_add_u32 v{WB}, 16384, v{WB}
    v_xor_b32 v{WB+1}, 64, v{WB}
    v_add_u32 v{WB+2}, 0x10000, v{WB}
    v_add_u32 v{WB+3}, 0x10000, v{WB+1}
    ; store voffset: hh*US + (128m + 64wm + l%32)*8 ; unit base (32n+16wn)*US in s27
    s_mov_b32 s26, {US}
    v_mul_lo_u32 v{ST}, s26, v14
    v_lshl_add_u32 v{ST}, v1, 4, v{ST}
    s_lshl_b32 s26, s20, 10
    s_lshl_b32 s27, s24, 9
    s_add_u32 s26, s26, s27
    v_add_u32 v{ST}, s26, v{ST}
    s_lshl_b32 s27, s21, 1
    s_add_u32 s27, s27, s25
    s_mul_i32 s27, s27, {16*US}
    """)
    def X(buf, rb): return FR + buf*16 + rb*4
    def W(buf, c): return FR + buf*16 + 8 + c*4
    def acc(c, rb): return ACC + (c*2+rb)*16
    def reads(t):
        s, ks = divmod(t, 4); slot = s % D; buf = t % 3
        hi = slot >= 2; so = (slot & 1)*32768
        x = [f"ds_read_b128 {vr(X(buf,rb),4)}, v{XA+ks+(4 if hi else 0)} offset:{so+rb*4096}" for rb in range(2)]
        w = [f"ds_read_b64_tr_b16 {vr(W(buf,c)+2*tt,2)}, v{WB+c+(2 if hi else 0)} offset:{so+(16*ks+4*tt)*256}" for c in range(2) for tt in range(2)]
        return [x[0], w[0], w[1], x[1], w[2], w[3]]
    a("s_barrier"); mark(a,0)
    for r in reads(0) + reads(1): a(r)
    for t in range(40):
        rd = reads(t+2) if t+2 < 40 else []
        a(f"s_waitcnt lgkmcnt({6 if t+1 < 40 else 0})")
        buf = t % 3; n = 0
        for c in range(2):
            for rb in range(2):
                cop = "0" if t == 0 else vr(acc(c,rb),16)
                a(f"v_mfma_f32_32x32x16_bf16 {vr(acc(c,rb),16)}, {vr(W(buf,c),4)}, {vr(X(buf,rb),4)}, {cop}")
                if n == 0 and rd and (t+2) % 4 == 0: a("s_barrier")
                for r in rd[2*n:2*n+2]: a(r)
                n += 1
    mark(a,1)
    a(f"s_nop 7\ns_nop 7\ns_cmp_ge_u32 s21, 5\ns_cbranch_scc1 K1_NOSC")
    a(f"s_mov_b32 s34, {f32(QSCALE)}\ns_mov_b32 s35, s34")
    for i in range(32): a(f"v_pk_mul_f32 {vr(ACC+2*i,2)}, {vr(ACC+2*i,2)}, s[34:35]")
    a.label("K1_NOSC")
    k = 0
    for c in range(2):
        for q in range(4):
            a(f"s_add_u32 s28, s27, {(8*c+2*q)*US}")
            d = FR + 4*k; k += 1
            for rb in range(2):
                b = acc(c,rb)+4*q
                a(f"v_cvt_pk_bf16_f32 v{d+2*rb}, v{b}, v{b+1}\nv_cvt_pk_bf16_f32 v{d+2*rb+1}, v{b+2}, v{b+3}")
            a(f"buffer_store_dwordx4 {vr(d,4)}, v{ST}, s[48:51], s28 offen")
    endk(a)
    a.label("K1_R")
    srd(a, 48, 8, WS_SM, SZ_SM)
    WR=8; WG=28; XR=48
    a(f"""
    v_and_b32 v1, 15, v0             ; j
    v_lshrrev_b32 v2, 4, v0          ; l/16
    v_lshlrev_b32 v3, 4, v1
    s_lshl_b32 s24, s20, 7
    s_lshl_b32 s25, s23, 4
    s_add_u32 s24, s24, s25
    v_add_u32 v4, s24, v2
    v_mul_u32_u24 v4, 1280, v4
    v_add_u32 v4, v4, v3
    """)
    for i in range(5):
        a(f"global_load_dwordx4 {vr(WR+4*i,4)}, v3, s[10:11] offset:{256*i}")
        a(f"global_load_dwordx4 {vr(WG+4*i,4)}, v3, s[12:13] offset:{256*i}")
    for p in range(4):
        a(f"s_mov_b32 s26, {p*5120}")
        for i in range(5):
            a(f"buffer_load_dwordx4 {vr(XR+20*p+4*i,4)}, v4, s[40:43], s26 offen offset:{256*i}")
    AR = [XR, XR+20, XR+40, XR+60]
    for p in range(4):
        a(f"s_waitcnt vmcnt({15-5*p})")
        a("v_mov_b32 v5, 0\nv_mov_b32 v6, 0")
        for i in range(20):
            a(f"v_dot2_f32_bf16 v5, v{XR+20*p+i}, v{WR+i}, v5")
            a(f"v_dot2_f32_bf16 v6, v{XR+20*p+i}, v{WG+i}, v6")
        for sh in (8,4,2,1):
            a(f"v_add_f32_dpp v5, v5, v5 row_ror:{sh} row_mask:0xf bank_mask:0xf")
            a(f"v_add_f32_dpp v6, v6, v6 row_ror:{sh} row_mask:0xf bank_mask:0xf")
        if p == 0:
            a(f"v_mov_b32 v{AR[0]}, v5\nv_mov_b32 v{AR[0]+1}, v6")
        else:
            a(f"v_cmp_eq_u32 vcc, {p}, v1")
            a(f"v_cndmask_b32 v{AR[0]}, v{AR[0]}, v5, vcc\nv_cndmask_b32 v{AR[0]+1}, v{AR[0]+1}, v6, vcc")
    R=AR[0]; G=AR[0]+1
    a(f"""
    v_lshl_add_u32 v2, v1, 2, v2
    v_add_u32 v7, s24, v2
    """)
    rnd_bf16(a, R, R)
    a(f"""
    v_ashrrev_i32 v5, 31, v{R}
    v_or_b32 v5, 0x80000000, v5
    v_xor_b32 v5, v5, v{R}
    v_and_b32 v5, 0xffff0000, v5
    v_sub_u32 v6, 0xffff, v7
    v_or_b32 v5, v5, v6              ; key
    s_mov_b32 s27, {f32(-LOG2E)}
    """)
    rnd_bf16(a, G, G)
    sigmoid(a, G, G, 27)
    rnd_bf16(a, G, G)
    a(f"""
    v_add_u32 v2, s25, v2
    v_lshlrev_b32 v2, 2, v2
    v_lshlrev_b32 v7, 2, v7
    v_cmp_gt_u32 vcc, 4, v1
    s_and_saveexec_b64 s[30:31], vcc
    ds_write_b32 v2, v5
    s_mov_b32 s26, {SM_G}
    buffer_store_dword v{G}, v7, s[48:51], s26 offen
    s_mov_b64 exec, s[30:31]
    s_waitcnt lgkmcnt(0)
    s_barrier
    s_cmp_lg_u32 s23, 0
    s_cbranch_scc1 K1_END2
    v_lshlrev_b32 v2, 3, v0
    ds_read_b64 v[4:5], v2
    s_waitcnt lgkmcnt(0)
    """)
    top8(a, 4, 5, 6, 56)
    for r in range(8): a(f"v_mov_b32 v{8+r}, s{56+r}")
    a(f"""
    s_lshl_b32 s26, s20, 5
    v_mov_b32 v2, s26
    v_cmp_eq_u32 vcc, 0, v0
    s_and_saveexec_b64 s[30:31], vcc
    buffer_store_dwordx4 v[8:11], v2, s[48:51], 0 offen offset:{SM_CAND}
    buffer_store_dwordx4 v[12:15], v2, s[48:51], 0 offen offset:{SM_CAND+16}
    """)
    a.label("K1_END2")
    endk(a)
    a.label("K1_END")
    a("s_endpgm")
    return nm, 128

NMOE = 48
UV = 4128; VB = 24576
K2_LDS = 76*1024
def gen_k2(a):
    nm = "attn_kernel"; KIDX[0]=1; khead(a, nm)
    a(f"""
    s_load_dwordx2 s[8:9], s[0:1], 88
    s_load_dwordx2 s[4:5], s[0:1], 0
    s_load_dwordx4 s[12:15], s[0:1], 40
    s_load_dwordx2 s[16:17], s[0:1], 56
    s_cmp_ge_u32 s2, {256+NMOE}
    s_cbranch_scc1 K2_END
    v_lshrrev_b32 v1, 6, v0
    v_lshlrev_b32 v2, 3, v0          ; tid*8
    v_and_b32 v0, 63, v0
    v_readfirstlane_b32 s23, v1      ; wave
    v_readfirstlane_b32 s89, v1
    s_cmp_lt_u32 s2, {NMOE}
    s_cbranch_scc1 K2_MOE
    s_sub_u32 s20, s2, {NMOE}
    s_and_b32 s21, s20, 7
    s_lshl_b32 s21, s21, 2
    s_lshr_b32 s22, s20, 6
    s_add_u32 s21, s21, s22
    s_bfe_u32 s20, s20, 0x30003      ; c = (id>>3)&7
    s_waitcnt lgkmcnt(0)
    """)
    mark(a,6)
    srd(a, 40, 8, WS_QKV, SZ_QKV)
    KA0=3; KA1=4; VA=5; Q0=6; Q1=10; KF=12; VF=24; S0=40; P=72; CM=80; O=96; T=112
    a(f"""
    s_and_b32 s24, s23, 3
    s_lshr_b32 s25, s23, 2
    s_lshl_b32 s26, s20, 1
    s_add_u32 s26, s26, s24
    s_lshl_b32 s27, s26, 10
    s_sub_u32 s27, s27, 2048
    s_cmp_lt_u32 s26, 2
    s_cselect_b32 s27, 0x40000000, s27
    v_lshl_add_u32 v{T}, v0, 4, s27
    s_mul_i32 s28, s21, {5*US}       ; 5h*US
    s_mul_i32 s29, s25, {160*US}
    s_add_u32 s29, s29, s28
    s_add_u32 s29, s29, {160*US}
    s_mul_i32 s30, s25, {VB}
    s_lshl_b32 s31, s24, 10
    s_add_u32 s30, s30, s31
    s_lshl_b32 s31, s25, 5
    s_add_u32 s31, s31, 4096
    """)
    for u in range(5):
        a(f"s_mov_b32 m0, s30")
        a(f"buffer_load_dwordx4 v{T}, s[40:43], s29 offen lds")
        if u < 4: a(f"s_add_u32 s30, s30, s31\ns_add_u32 s29, s29, {US}")
    mark(a,2)
    a(f"""
    v_and_b32 v1, 31, v0             ; i = l%32
    v_lshrrev_b32 v{T+1}, 5, v0      ; hh
    s_mov_b32 s29, {2*US}
    v_mul_lo_u32 v{T+2}, s29, v{T+1}
    s_lshl_b32 s29, s20, 3
    s_add_u32 s29, s29, s23
    s_lshl_b32 s29, s29, 8           ; (8c+w)*32*8
    v_lshl_add_u32 v{T+3}, v1, 3, s29 ; token*8
    v_add_u32 v{T+2}, v{T+2}, v{T+3}
    s_add_u32 s29, s28, {US}
    s_add_u32 s30, s28, {4*US}
    buffer_load_dwordx2 {vr(Q0,2)}, v{T+2}, s[40:43], s28 offen
    buffer_load_dwordx2 {vr(Q0+2,2)}, v{T+2}, s[40:43], s29 offen
    buffer_load_dwordx2 {vr(Q1,2)}, v{T+3}, s[40:43], s30 offen
    """)
    a(f"""
    s_cmp_eq_u32 s20, 0
    s_cselect_b32 s29, 0xf149, 0
    s_cmp_lt_u32 s23, 4
    s_cselect_b32 s29, s29, 0
    v_mov_b32 v{S0}, s29
    v_mov_b32 v{S0+1}, 0
    v_mov_b32 v{S0+2}, 0x3f803f80
    v_mov_b32 v{S0+3}, 0x3f803f80
    ds_write_b64 v2, {vr(S0,2)} offset:{5*4096}
    ds_write_b64 v2, {vr(S0+2,2)} offset:{VB+5*UV}
    ; addresses
    s_lshl_b32 s29, s23, 8           ; w*32*8
    v_lshl_add_u32 v{KA1}, v1, 3, s29
    v_lshl_add_u32 v{KA0}, v{T+1}, 13, v{KA1}
    v_lshl_add_u32 v{KA1}, v{T+1}, 12, v{KA1}
    v_bfe_u32 v{VA}, v0, 4, 1        ; dhalf
    v_and_b32 v{T+4}, 3, v0
    v_lshl_add_u32 v{VA}, v{VA}, 2, v{T+4}
    v_min_u32 v{VA}, 5, v{VA}
    v_mul_u32_u24 v{VA}, {UV}, v{VA}
    v_bfe_u32 v{T+4}, v0, 2, 2       ; r
    v_lshl_add_u32 v{T+4}, v{T+1}, 2, v{T+4}
    v_lshl_add_u32 v{VA}, v{T+4}, 3, v{VA}
    v_add_u32 v{VA}, s29, v{VA}
    ; masks
    v_lshlrev_b32 v{T+4}, 2, v{T+1}
    v_sub_u32 v{T+4}, v1, v{T+4}     ; i-4hh
    v_mov_b32 v{T+5}, {f32(NEGBIG)}
    """)
    MK = 56
    for r in range(16):
        a(f"v_cmp_le_i32 {sr(MK+2*r,2)}, {8*(r//4)+r%4}, v{T+4}")
    srd(a, 44, 8, WS_O, SZ_O)
    mark(a,3)
    a("s_waitcnt vmcnt(0)")
    mark(a,4)
    a(f"""
    v_cmp_eq_u32 vcc, 0, v{T+1}
    v_mov_b32 v{T+6}, 0x3f80
    s_waitcnt vmcnt(0)
    v_cndmask_b32 v{Q1}, v{T+6}, v{Q1}, vcc
    v_cndmask_b32 v{Q1+1}, 0, v{Q1+1}, vcc
    s_waitcnt lgkmcnt(0)
    s_barrier
    """)
    mark(a,0)
    NEG = T+5; M = T+6
    def Sb(u): return S0 + 16*(u & 1)
    def Kb(u): return KF + 6*(u & 1)
    def Vb(u): return VF + 8*(u & 1)
    def kreads(u):
        b = u % 9
        a(f"ds_read_b64 {vr(Kb(u),2)}, v{KA0} offset:{b*256}")
        a(f"ds_read_b64 {vr(Kb(u)+2,2)}, v{KA0} offset:{4096+b*256}")
        a(f"ds_read_b64 {vr(Kb(u)+4,2)}, v{KA1} offset:{16384+b*256}")
    def vreads(u):
        b = u % 9
        for j in range(4):
            a(f"ds_read_b64_tr_b16 {vr(Vb(u)+2*j,2)}, v{VA} offset:{VB+b*256+j*64}")
    def maskinit(u):
        b = u % 9; good = "0" if u < 9 else f"v{CM}"
        for r in range(16):
            if b == 8: a(f"v_cndmask_b32 v{Sb(u)+r}, v{NEG}, {good}, {sr(MK+2*r,2)}")
            else:      a(f"v_cndmask_b32 v{Sb(u)+r}, {good}, v{NEG}, {sr(MK+2*r,2)}")
    def qk0(u):
        b = u % 9
        c = vr(Sb(u),16) if b in (0,8) else ("0" if u < 9 else vr(CM,16))
        return f"v_mfma_f32_32x32x16_bf16 {vr(Sb(u),16)}, {vr(Kb(u),4)}, {vr(Q0,4)}, {c}"
    def qk1(u):
        return f"v_mfma_f32_32x32x8_bf16 {vr(Sb(u),16)}, {vr(Kb(u)+4,2)}, {vr(Q1,2)}, {vr(Sb(u),16)}"
    kreads(0); kreads(1); maskinit(0)
    a(f"v_mov_b32 v{M}, v{NEG}")
    a("s_waitcnt lgkmcnt(3)"); a(qk0(0)); a(qk1(0))
    for u in range(9):
        if u < 8:
            if u+1 == 8: maskinit(8)
            a("s_waitcnt lgkmcnt(0)")
            a(qk0(u+1)); a(qk1(u+1))
        kreads(u+2)
        if u == 8: vreads(9)
        for r in range(8):
            a(f"v_max3_f32 v{M}, v{Sb(u)+2*r}, v{Sb(u)+2*r+1}, v{M}")
    a(f"""
    v_mov_b32 v{T+7}, v{M}
    v_permlane32_swap_b32 v{M}, v{T+7}
    v_max_f32 v{M}, v{M}, v{T+7}
    """)
    for r in range(16): a(f"v_sub_f32 v{CM+r}, 0, v{M}")
    maskinit(9)
    mark(a,5)
    a("s_waitcnt lgkmcnt(7)"); a(qk0(9)); a(qk1(9))
    for u in range(9, 18):
        S = Sb(u); last = (u == 17)
        ex = [f"v_exp_f32 v{S+r}, v{S+r}" for r in range(16)]
        cv = [f"v_cvt_pk_bf16_f32 v{P+r}, v{S+2*r}, v{S+2*r+1}" for r in range(8)]
        if not last:
            if u+1 == 17: maskinit(17)
            a("s_waitcnt lgkmcnt(4)")
            a(qk0(u+1))
        for r in range(4): a(ex[r])
        if not last: a(qk1(u+1))
        if u+2 < 18: kreads(u+2)
        if not last: vreads(u+1)
        for r in range(4, 9): a(ex[r])
        for r in range(4): a(cv[r])
        for r in range(9, 12): a(ex[r])
        nout = (3 if u+2 < 18 else 0) + (0 if last else 4)
        a(f"s_waitcnt lgkmcnt({nout})")
        oc = "0" if u == 9 else vr(O,16)
        a(f"v_mfma_f32_32x32x16_bf16 {vr(O,16)}, {vr(Vb(u),4)}, {vr(P,4)}, {oc}")
        for r in range(12, 16): a(ex[r])
        for r in range(4, 8): a(cv[r])
        a(f"v_mfma_f32_32x32x16_bf16 {vr(O,16)}, {vr(Vb(u)+4,4)}, {vr(P+4,4)}, {vr(O,16)}")
    mark(a,1)
    a(f"""
    s_mov_b32 s29, {US}
    v_mul_lo_u32 v{T+2}, s29, v{T+1}
    v_add_u32 v{T+2}, v{T+2}, v{T+3}
    v_lshl_or_b32 v{T+3}, v{T+1}, 30, v{T+3}
    s_add_u32 s29, s28, {2*US}
    v_rcp_f32 v{T}, v{O+12}
    """)
    for r in range(12): a(f"v_mul_f32 v{O+r}, v{O+r}, v{T}")
    for r in range(6): a(f"v_cvt_pk_bf16_f32 v{P+r}, v{O+2*r}, v{O+2*r+1}")
    a(f"""
    buffer_store_dwordx2 {vr(P,2)}, v{T+2}, s[44:47], s28 offen
    buffer_store_dwordx2 {vr(P+2,2)}, v{T+2}, s[44:47], s29 offen
    buffer_store_dwordx2 {vr(P+4,2)}, v{T+3}, s[44:47], s30 offen
    """)
    endk(a)
    a.label("K2_MOE")
    HB = 0; RED = 2048; WD = RED + 32768
    L=16; XF=96; AC=L
    a(f"""
    s_cmp_ge_u32 s2, 24
    s_cselect_b32 s21, 1, 0          ; half
    s_cselect_b32 s20, 24, 0
    s_sub_u32 s20, s2, s20
    s_waitcnt lgkmcnt(0)
    """)
    srd(a, 40, 8, WS_SM, SZ_SM)
    srd(a, 44, 16, 0, 1536*1280)
    srd(a, 48, 4, 0, 2048*1280)
    a(f"""
    v_lshlrev_b32 v1, 3, v0
    buffer_load_dwordx2 v[4:5], v1, s[40:43], 0 offen offset:{SM_CAND}
    v_bfe_u32 v1, v0, 3, 1           ; mat
    v_cmp_eq_u32 vcc, 0, v1
    v_mov_b32 v6, s14
    v_mov_b32 v7, s15
    v_mov_b32 v8, s12
    v_mov_b32 v9, s13
    v_cndmask_b32 v6, v6, v8, vcc
    v_cndmask_b32 v7, v7, v9, vcc
    v_lshrrev_b32 v3, 4, v0          ; g
    s_mul_i32 s24, s23, 80
    v_lshl_add_u32 v8, v3, 2, s24    ; 80w + 4g
    v_mul_u32_u24 v9, 3072, v8
    v_and_b32 v10, 7, v0             ; c
    v_lshl_add_u32 v9, v10, 4, v9
    s_lshl_b32 s25, s20, 7
    v_add_u32 v9, s25, v9
    v_add_co_u32 v6, vcc, v6, v9
    v_addc_co_u32 v7, vcc, 0, v7, vcc
    s_mov_b32 s26, {2*3072}
    s_mov_b32 s27, 0
    s_mov_b32 s28, {14*3072}
    s_mov_b32 s29, 0
    """)
    for b in range(5):
        for i in range(4):
            a(f"global_load_dwordx4 {vr(L+16*b+4*i,4)}, v[6:7], off offset:{(i&1)*3072}")
            if i == 1: a("v_lshl_add_u64 v[6:7], v[6:7], 0, s[26:27]")
            if i == 3 and b < 4: a("v_lshl_add_u64 v[6:7], v[6:7], 0, s[28:29]")
    a(f"""
    s_lshl_b32 s24, s20, 6
    s_lshl_b32 s25, s23, 3
    s_add_u32 s24, s24, s25
    s_mul_i32 s24, s24, 1280
    s_mul_i32 s25, s21, 640
    s_add_u32 s24, s24, s25          ; soffset
    s_mul_i32 s25, s23, 5120
    s_add_u32 s25, s25, {WD}
    """)
    for i in range(5):
        a(f"""
        v_add_u32 v11, {64*i}, v0
        v_mul_u32_u24 v12, 1639, v11
        v_lshrrev_b32 v12, 16, v12       ; row = L/40
        v_mul_u32_u24 v13, 40, v12
        v_sub_u32 v11, v11, v13          ; pos
        v_and_b32 v13, 6, v12
        v_xor_b32 v11, v11, v13          ; chunk
        v_mul_u32_u24 v12, 1280, v12
        v_lshl_add_u32 v11, v11, 4, v12
        s_add_u32 m0, s25, {1024*i}
        buffer_load_dwordx4 v11, s[44:47], s24 offen lds
        """)
    mark(a,2)
    a("s_waitcnt vmcnt(25)")
    mark(a,3)
    top8(a, 4, 5, 11, 56)
    mark(a,0)
    a(f"v_mov_b32 v4, s56")
    for r in range(1, 8):
        a(f"v_cmp_eq_u32 vcc, {r}, v10\nv_mov_b32 v5, s{56+r}\nv_cndmask_b32 v4, v4, v5, vcc")
    a(f"""
    v_and_b32 v5, 0xffff, v4
    v_sub_u32 v5, 0xffff, v5         ; idx
    v_mul_u32_u24 v5, 1280, v5
    v_lshl_add_u32 v5, v8, 1, v5     ; + (80w+4g)*2
    """)
    for b in range(5):
        a(f"buffer_load_dwordx2 {vr(XF+2*b,2)}, v5, s[48:51], 0 offen offset:{32*b}")
    a(f"""
    s_or_b32 s24, s2, s23
    s_cmp_lg_u32 s24, 0
    s_cbranch_scc1 K2_NOSEL
    v_lshlrev_b32 v11, 2, v0
    v_cmp_gt_u32 vcc, 8, v0
    s_and_saveexec_b64 s[30:31], vcc
    buffer_store_dword v4, v11, s[40:43], 0 offen offset:{SM_SEL}
    s_mov_b64 exec, s[30:31]
    """)
    a.label("K2_NOSEL")
    a("s_mov_b32 s24, 0x05040100\ns_mov_b32 s25, 0x07060302\ns_waitcnt vmcnt(0)")
    mark(a,1)
    TP = 106
    ACC = [None]*8
    def perm(b, j, d):
        q = j//2; sel = 24 + (j & 1)
        a(f"v_perm_b32 v{d}, v{L+16*b+4+q}, v{L+16*b+q}, s{sel}")
        a(f"v_perm_b32 v{d+1}, v{L+16*b+12+q}, v{L+16*b+8+q}, s{sel}")
    for j in range(8): perm(0, j, TP+2*j)
    for j in range(4): ACC[j] = L+4*j
    for j in range(4): a(f"v_mfma_f32_16x16x16_bf16 {vr(ACC[j],4)}, {vr(XF,2)}, {vr(TP+2*j,2)}, 0")
    for j in range(4): perm(1, j, TP+2*j)
    for j in range(4): a(f"v_mfma_f32_16x16x16_bf16 {vr(ACC[j],4)}, {vr(XF+2,2)}, {vr(TP+2*j,2)}, {vr(ACC[j],4)}")
    for j in range(4, 8): perm(1, j, TP+2*(j-4))
    for j in range(4, 8): ACC[j] = L+16+4*(j-4)
    for j in range(4, 8): a(f"v_mfma_f32_16x16x16_bf16 {vr(ACC[j],4)}, {vr(XF,2)}, {vr(TP+2*j,2)}, 0")
    for j in range(4, 8): a(f"v_mfma_f32_16x16x16_bf16 {vr(ACC[j],4)}, {vr(XF+2,2)}, {vr(TP+2*(j-4),2)}, {vr(ACC[j],4)}")
    for b in range(2, 5):
        for j in range(8): perm(b, j, TP+2*j)
        for j in range(8): a(f"v_mfma_f32_16x16x16_bf16 {vr(ACC[j],4)}, {vr(XF+2*b,2)}, {vr(TP+2*j,2)}, {vr(ACC[j],4)}")
    mark(a,4)
    a(f"""
    v_and_b32 v11, 15, v0
    v_lshlrev_b32 v11, 5, v11
    v_lshl_add_u32 v11, v3, 4, v11
    s_lshl_b32 s26, s23, 12
    v_add_u32 v11, s26, v11
    s_mov_b32 exec_hi, 0
    """)
    for j in range(8): a(f"ds_write_b128 v11, {vr(ACC[j],4)} offset:{RED+512*j}")
    a(f"""
    s_mov_b64 exec, -1
    s_lshl_b32 s26, s23, 9
    s_add_u32 s26, s26, {RED}
    v_lshl_add_u32 v11, v0, 2, s26
    s_waitcnt lgkmcnt(0)
    s_barrier
    """)
    mark(a,5)
    for w in range(8): a(f"ds_read2st64_b32 {vr(48+2*w,2)}, v11 offset0:{16*w} offset1:{16*w+1}")
    a(f"s_mov_b32 s27, {f32(-LOG2E)}\ns_waitcnt lgkmcnt(0)")
    for w in range(1, 8): a(f"v_pk_add_f32 v[48:49], v[48:49], {vr(48+2*w,2)}")
    rnd_bf16(a, 48, 48); rnd_bf16(a, 49, 49)
    sigmoid(a, 50, 48, 27)
    a("v_mul_f32 v48, v48, v50"); rnd_bf16(a, 48, 48)
    a(f"""
    v_mul_f32 v48, v48, v49
    v_cvt_pk_bf16_f32 v48, v48, v48
    ; hbuf[t][f=8c+j], t = l%8, c = l/8, row stride 144
    v_mul_u32_u24 v11, 144, v10
    v_lshrrev_b32 v12, 3, v0
    v_lshl_add_u32 v12, v12, 4, v11
    s_lshl_b32 s26, s23, 1
    v_add_u32 v12, s26, v12
    ds_write_b16 v12, v48 offset:{HB}
    v_lshl_add_u32 v11, v3, 3, v11
    ; w_down tr address: row = 4g + i/4 ; chunk = 2cg + (i%4)/2 ; pos = chunk ^ (row & 6)
    v_bfe_u32 v12, v0, 2, 2
    v_lshl_add_u32 v12, v3, 2, v12   ; row
    v_and_b32 v13, 6, v12
    s_lshl_b32 s26, s23, 1
    v_xor_b32 v13, s26, v13
    v_lshlrev_b32 v13, 4, v13
    v_mul_u32_u24 v12, 640, v12
    v_add_u32 v12, v12, v13
    v_and_b32 v13, 3, v0
    v_lshl_add_u32 v12, v13, 3, v12
    v_add_u32 v12, {WD}, v12
    ; store offset: ((js*8+t)*640 + half*320 + 16w + 4g)*4 ; lanes with l%16>=8 out of range
    v_mul_u32_u24 v13, 2560, v10
    v_lshl_add_u32 v13, v3, 4, v13
    v_lshl_or_b32 v13, v1, 30, v13
    s_mul_i32 s26, s20, {8*2560}
    s_mul_i32 s28, s21, 1280
    s_add_u32 s26, s26, s28
    s_lshl_b32 s28, s23, 6
    s_add_u32 s26, s26, s28
    s_add_u32 s26, s26, {SM_YP}
    s_waitcnt lgkmcnt(0)
    s_barrier
    """)
    mark(a,6)
    for s_ in range(2):
        for t in range(2):
            a(f"ds_read_b64 {vr(16+4*s_+2*t,2)}, v11 offset:{HB+64*s_+32*t}")
    for i in range(3):
        if i == 2: a("s_cmp_ge_u32 s23, 4\ns_cbranch_scc1 K2_END2")
        for s_ in range(2):
            for t in range(2):
                a(f"ds_read_b64_tr_b16 {vr(24+8*i+4*s_+2*t,2)}, v12 offset:{(32*s_+16*t)*640+256*i}")
        a("s_waitcnt lgkmcnt(0)")
        d = 48+4*i
        a(f"v_mfma_f32_16x16x32_bf16 {vr(d,4)}, {vr(24+8*i,4)}, v[16:19], 0")
        a(f"v_mfma_f32_16x16x32_bf16 {vr(d,4)}, {vr(24+8*i+4,4)}, v[20:23], {vr(d,4)}")
        a(f"buffer_store_dwordx4 {vr(d,4)}, v13, s[40:43], s26 offen offset:{512*i}")
    a.label("K2_END2")
    endk(a)
    a.label("K2_END")
    a("s_endpgm")
    return nm, 128

K3_YB = 0; K3_RED = 3072; K3_WO = K3_RED + 4*5*1024
K3_LDS = K3_WO + 640*160
def gen_k3(a):
    nm = "oproj_kernel"; KIDX[0]=2; khead(a, nm)
    a(f"""
    s_load_dwordx2 s[8:9], s[0:1], 88
    s_load_dwordx2 s[4:5], s[0:1], 0
    s_load_dwordx2 s[6:7], s[0:1], 16
    s_load_dwordx2 s[10:11], s[0:1], 72
    s_cmp_ge_u32 s2, 256
    s_cbranch_scc1 K3_END
    s_and_b32 s20, s2, 7
    s_lshr_b32 s21, s2, 3
    s_and_b32 s22, s21, 3
    s_lshl_b32 s20, s20, 2
    s_add_u32 s20, s20, s22          ; rb
    s_lshr_b32 s21, s21, 2           ; cb
    v_lshrrev_b32 v1, 6, v0
    v_and_b32 v0, 63, v0
    v_readfirstlane_b32 s23, v1
    v_readfirstlane_b32 s89, v1
    s_waitcnt lgkmcnt(0)
    s_add_u32 s12, s8, {WS_SM}
    s_addc_u32 s13, s9, 0
    s_load_dwordx8 s[56:63], s[12:13], {SM_SEL}
    """)
    mark(a,2)
    srd(a, 40, 6, 0, 640*1280)
    srd(a, 44, 8, WS_O, SZ_O)
    OF=16; ACC=56; WF=76; XV=100; T=106
    a(f"""
    v_mul_u32_u24 v1, 26, v0
    v_lshrrev_b32 v1, 8, v1          ; l/10
    v_mul_u32_u24 v2, 10, v1
    v_sub_u32 v2, v0, v2
    v_mul_u32_u24 v1, 1280, v1
    v_lshl_add_u32 v1, v2, 4, v1
    s_mul_i32 s24, s23, {80*1280}
    s_mul_i32 s25, s21, 160
    s_add_u32 s24, s24, s25
    s_mul_i32 s26, s23, {80*160}
    s_mov_b32 exec_hi, 0x3ffff
    """)
    for i in range(16):
        a(f"s_add_u32 m0, s26, {K3_WO+800*i}")
        a(f"buffer_load_dwordx4 v1, s[40:43], s24 offen lds")
        if i < 15: a(f"s_add_u32 s24, s24, {5*1280}")
    a(f"""
    s_mov_b64 exec, -1
    s_and_b32 s24, s23, 3            ; tg
    s_lshr_b32 s27, s23, 2           ; kh
    v_and_b32 v2, 15, v0
    v_lshrrev_b32 v3, 4, v0          ; g
    s_lshl_b32 s28, s20, 6
    s_lshl_b32 s29, s24, 4
    s_add_u32 s29, s29, s28
    v_add_u32 v4, s29, v2
    v_mul_u32_u24 v5, {US}, v3
    v_lshl_add_u32 v5, v4, 3, v5
    s_mul_i32 s30, s27, {80*US}
    """)
    for s_ in range(10):
        for t in range(2):
            a(f"buffer_load_dwordx2 {vr(OF+4*s_+2*t,2)}, v5, s[44:47], s30 offen")
            if not (s_ == 9 and t == 1): a(f"s_add_u32 s30, s30, {4*US}")
    mark(a,3)
    srd(a, 48, 4, 0, 2048*1280)
    srd(a, 52, 8, WS_SM, SZ_SM)
    srd(a, 64, 10, 0, 2048*1280)
    a(f"""
    v_mul_u32_u24 v6, 1280, v4
    v_lshl_add_u32 v6, v3, 3, v6
    s_mul_i32 s31, s27, 96
    s_add_u32 s31, s31, s25
    v_lshlrev_b32 v7, 2, v4
    s_mov_b32 s32, {SM_G}
    buffer_load_dword v{T}, v7, s[52:55], s32 offen
    """)
    for i in range(3):
        a(f"buffer_load_dwordx2 {vr(XV+2*i,2)}, v6, s[48:51], s31 offen offset:{32*i}")
    a(f"""
    v_lshlrev_b32 v8, 3, v0
    v_mov_b32 v10, 0
    v_mov_b32 v11, 0
    s_mov_b32 exec_hi, 0xff
    ds_write_b64 v8, v[10:11] offset:{K3_YB+8*320}
    s_mov_b64 exec, -1
    v_mov_b32 v9, 8
    s_waitcnt lgkmcnt(0)
    """)
    for t in range(8):
        a(f"""
        s_andn2_b32 s33, 0xffff, s{56+t}
        s_cmp_eq_u32 s23, {t}
        s_cselect_b32 s34, s{56+t}, s34
        v_cmp_ne_u32 vcc, s33, v4
        v_cndmask_b32 v9, {t}, v9, vcc
        """)
    a(f"""
    v_mul_u32_u24 v9, 320, v9
    v_lshl_add_u32 v9, v3, 4, v9
    s_mul_i32 s33, s27, 192
    v_add_u32 v9, s33, v9
    s_andn2_b32 s33, 0xffff, s34
    s_sub_u32 s33, s33, s28
    s_cmp_ge_u32 s33, 64
    s_cbranch_scc1 K3_NOY
    s_mul_i32 s33, s23, 2560
    s_lshl_b32 s35, s25, 1
    s_add_u32 s33, s33, s35
    s_add_u32 s33, s33, {SM_YP}
    s_mov_b32 exec_hi, 0xff
    """)
    YT = ACC
    for half in range(2):
        for p in range(12):
            a(f"buffer_load_dwordx2 {vr(YT+2*p,2)}, v8, s[52:55], s33 offen")
            a(f"s_add_u32 s33, s33, {8*2560}")
        a("s_waitcnt vmcnt(0)")
        for p in range(12): a(f"v_pk_add_f32 v[10:11], v[10:11], {vr(YT+2*p,2)}")
    a(f"""
    s_ashr_i32 s35, s34, 31
    s_not_b32 s35, s35
    s_or_b32 s35, s35, 0x80000000
    s_xor_b32 s35, s35, s34
    s_and_b32 s35, s35, 0xffff0000
    v_mov_b32 v12, s35
    s_mov_b32 s36, {f32(-LOG2E)}
    """)
    sigmoid(a, 12, 12, 36); rnd_bf16(a, 12, 12)
    rnd_bf16(a, 10, 10); rnd_bf16(a, 11, 11)
    a("v_mul_f32 v10, v10, v12\nv_mul_f32 v11, v11, v12")
    rnd_bf16(a, 10, 10); rnd_bf16(a, 11, 11)
    a(f"""
    s_mul_i32 s33, s23, 320
    v_add_u32 v8, s33, v8
    ds_write_b64 v8, v[10:11] offset:{K3_YB}
    s_mov_b64 exec, -1
    """)
    a.label("K3_NOY")
    mark(a,4)
    a("s_waitcnt vmcnt(0)")
    mark(a,5)
    a(f"""
    ; wo tr address: row = 320kh + 4g + i/4 ; col bytes = (i%4)*8
    v_bfe_u32 v12, v0, 2, 2
    v_lshl_add_u32 v12, v3, 2, v12
    v_mul_u32_u24 v12, 160, v12
    v_and_b32 v13, 3, v0
    v_lshl_add_u32 v12, v13, 3, v12
    s_mul_i32 s33, s27, {320*160}
    s_add_u32 s33, s33, {K3_WO}
    v_add_u32 v12, s33, v12
    s_mul_i32 s33, s24, 5120
    s_add_u32 s33, s33, {K3_RED}
    v_lshl_add_u32 v13, v0, 4, s33
    s_waitcnt vmcnt(0) lgkmcnt(0)
    s_barrier
    """)
    mark(a,0)
    seq = [(s_, cg) for s_ in range(10) for cg in range(5)]
    def rd(n):
        s_, cg = seq[n]; f = WF + 4*(n % 6)
        for t in range(2):
            a(f"ds_read_b64_tr_b16 {vr(f+2*t,2)}, v12 offset:{(32*s_+16*t)*160+32*cg}")
    AH = 5
    for n in range(AH): rd(n)
    for n in range(50):
        s_, cg = seq[n]; f = WF + 4*(n % 6)
        rem = min(50, n+AH) - n - 1
        a(f"s_waitcnt lgkmcnt({2*rem})")
        c = "0" if s_ == 0 else vr(ACC+4*cg,4)
        a(f"v_mfma_f32_16x16x32_bf16 {vr(ACC+4*cg,4)}, {vr(f,4)}, {vr(OF+4*s_,4)}, {c}")
        if n+AH < 50: rd(n+AH)
    mark(a,1)
    a("s_nop 7\ns_cmp_eq_u32 s27, 0\ns_cbranch_scc1 K3_H0")
    def fin(mine, other, lab):
        for cg in other: a(f"ds_write_b128 v13, {vr(ACC+4*cg,4)} offset:{1024*cg}")
        a("s_waitcnt lgkmcnt(0)\ns_barrier")
        mark(a,6)
        for i, cg in enumerate(mine):
            a(f"ds_read_b128 {vr(OF+4*i,4)}, v13 offset:{1024*cg}")
            a(f"ds_read_b128 {vr(OF+12+4*i,4)}, v9 offset:{K3_YB+64*i}")
        a(f"v_sub_f32 v{T+1}, 1.0, v{T}"); rnd_bf16(a, T+1, T+1)
        a("s_waitcnt lgkmcnt(0)")
        for i, cg in enumerate(mine):
            A_ = ACC+4*cg; Y = OF+12+4*i; X = XV+2*i; t = WF
            for e in range(4): a(f"v_add_f32 v{A_+e}, v{A_+e}, v{OF+4*i+e}")
            a(f"v_cvt_pk_bf16_f32 v{t}, v{A_}, v{A_+1}\nv_cvt_pk_bf16_f32 v{t+1}, v{A_+2}, v{A_+3}")
            def unpack(d, s):
                a(f"v_lshlrev_b32 v{d}, 16, v{s}\nv_and_b32 v{d+1}, 0xffff0000, v{s}")
                a(f"v_lshlrev_b32 v{d+2}, 16, v{s+1}\nv_and_b32 v{d+3}, 0xffff0000, v{s+1}")
            def rnd4(r):
                a(f"v_cvt_pk_bf16_f32 v{t}, v{r}, v{r+1}\nv_cvt_pk_bf16_f32 v{t+1}, v{r+2}, v{r+3}")
                unpack(r, t)
            unpack(A_, t)
            for e in range(4): a(f"v_mul_f32 v{A_+e}, v{A_+e}, v{T}")
            rnd4(A_)
            unpack(t+4, X)
            for e in range(4): a(f"v_add_f32 v{Y+e}, v{Y+e}, v{t+4+e}")
            rnd4(Y)
            for e in range(4): a(f"v_mul_f32 v{Y+e}, v{Y+e}, v{T+1}")
            rnd4(Y)
            for e in range(4): a(f"v_add_f32 v{A_+e}, v{A_+e}, v{Y+e}")
            if DELTA:
                for e in range(4): a(f"v_add_f32 v{A_+e}, {f32(DELTA)}, v{A_+e}")
            o = t+8+2*i
            a(f"v_cvt_pk_bf16_f32 v{o}, v{A_}, v{A_+1}\nv_cvt_pk_bf16_f32 v{o+1}, v{A_+2}, v{A_+3}")
            a(f"buffer_store_dwordx2 {vr(o,2)}, v6, s[64:67], s31 offen offset:{32*i}")
        endk(a)
    fin([3,4],[0,1,2],"h1")
    a.label("K3_H0")
    fin([0,1,2],[3,4],"h0")
    a.label("K3_END")
    a("s_endpgm")
    return nm, 112

isr = lambda w: (w>>5)==7 and (w&4)
GROUPS = {0:[("gemm-c",[w for w in range(256) if not isr(w)],[0,1,2,3]),("gemm-l",[w for w in range(256) if not isr(w)],[4,5,6,7]),("r",[w for w in range(256) if isr(w)],[0])],
          1:[("moe",list(range(48)),[0,1,2,3]),("attn",list(range(48,304)),list(range(8)))],
          2:[("op",list(range(256)),list(range(8)))]}
HEADER = open("cdna_kernels/%s.s.ref" % NAME).read().split("; Override launch geometry")[0]

def build():
    a = Asm()
    ks = [gen_k1(a), gen_k2(a), gen_k3(a)]
    launches = [("qkv_kernel",256,512,K1_LDS),("attn_kernel",256+NMOE,512,K2_LDS),("oproj_kernel",256,512,K3_LDS)]
    if EXTRA:
        khead(a, "nop_kernel"); a("s_endpgm"); ks.append(("nop_kernel", 8))
        launches += [("nop_kernel",256,64,0)]*EXTRA
    out = HEADER
    for (n,g,b,l) in launches: out += f"; @launch kernel={n} grid=({g},1,1) block=({b},1,1) lds={l}\n"
    out += '.amdgcn_target "amdgcn-amd-amdhsa--gfx950"\n'
    out += a.text()
    for i,(n,v) in enumerate(ks): out += kd(n, max(v, STV[i]+1) if STAMP else v)
    return out

if __name__ == "__main__":
    p = sys.argv[1] if len(sys.argv) > 1 else "cdna_kernels/%s.s" % NAME
    for o in sys.argv[2:]:
        k, v = o.split("="); globals()[k] = eval(v)
    open(p, "w").write(build())
    print("wrote", p)
```

```python
import sys, struct
from asmlib import *

NAME = "gated_mix__sliding_block__moe_arch_mod__prompt"
US = 16640
WS_QKV = 0;          SZ_QKV = 480*US
WS_O   = 0x800000;   SZ_O   = 160*US
WS_SM  = 0xB00000
SM_CAND = 0; SM_SEL = 0x400; SM_G = 0x1000; SM_YP = 0x10000
SZ_SM  = SM_YP + 24*8*640*4
def f32(x): return "0x%08x" % struct.unpack("<I", struct.pack("<f", x))[0]
QSCALE = (20 ** -0.5) * 1.4426950408889634
LOG2E = 1.4426950408889634
NEGBIG = -1.0e30

def srd(a, d, plo, off, size):
    if off:
        a(f"s_add_u32 s{d}, s{plo}, {off}")
        a(f"s_addc_u32 s{d+1}, s{plo+1}, 0")
    else:
        a(f"s_mov_b32 s{d}, s{plo}")
        a(f"s_mov_b32 s{d+1}, s{plo+1}")
    a(f"s_mov_b32 s{d+2}, {size}")
    a(f"s_mov_b32 s{d+3}, 0x20000")

def top8(a, va, vb, vt, sk):
    for r in range(8):
        a(f"v_max_u32 v{vt}, v{va}, v{vb}")
        for sh in (1,2,4,8):
            a(f"v_max_u32_dpp v{vt}, v{vt}, v{vt} row_shr:{sh} row_mask:0xf bank_mask:0xf")
        a(f"v_max_u32_dpp v{vt}, v{vt}, v{vt} row_bcast:15 row_mask:0xa bank_mask:0xf")
        a(f"v_max_u32_dpp v{vt}, v{vt}, v{vt} row_bcast:31 row_mask:0xc bank_mask:0xf")
        a(f"v_readlane_b32 s{sk+r}, v{vt}, 63")
        if r < 7:
            a(f"v_cmp_ne_u32 vcc, s{sk+r}, v{va}")
            a(f"v_cndmask_b32 v{va}, 0, v{va}, vcc")
            a(f"v_cmp_ne_u32 vcc, s{sk+r}, v{vb}")
            a(f"v_cndmask_b32 v{vb}, 0, v{vb}, vcc")

def sigmoid(a, vd, vs, slog):
    a(f"v_mul_f32 v{vd}, s{slog}, v{vs}")
    a(f"v_exp_f32 v{vd}, v{vd}")
    a(f"v_add_f32 v{vd}, 1.0, v{vd}")
    a(f"v_rcp_f32 v{vd}, v{vd}")

def rnd_bf16(a, vd, vs):
    a(f"v_cvt_pk_bf16_f32 v{vd}, v{vs}, v{vs}")
    a(f"v_and_b32 v{vd}, 0xffff0000, v{vd}")

def kd(name, vgpr, sgpr=96):
    if STAMP: sgpr = 102
    acc = (vgpr+3)//4*4
    return f""".section .rodata,"a"
.p2align 6
.amdhsa_kernel {name}
  .amdhsa_next_free_vgpr {vgpr}
  .amdhsa_next_free_sgpr {sgpr}
  .amdhsa_accum_offset {acc}
  .amdhsa_group_segment_fixed_size 0
  .amdhsa_kernarg_size 96
  .amdhsa_user_sgpr_count 2
  .amdhsa_user_sgpr_kernarg_segment_ptr 1
  .amdhsa_system_sgpr_workgroup_id_x 1
.end_amdhsa_kernel
"""

STAMP = False
DELTA = 0.0
WS_ST = 0xC00000
KIDX = [0]
STV = [130, 127, 130]
def khead(a, name):
    a(f".text\n.globl {name}\n.p2align 8\n.type {name},@function")
    a.label(name)
    if STAMP:
        a(f"s_memrealtime s[90:91]\ns_memtime s[96:97]\nv_mov_b32 v{STV[KIDX[0]]}, 0")
def mark(a, i):
    if STAMP:
        a(f"s_memtime s[92:93]\ns_waitcnt lgkmcnt(0)\ns_sub_u32 s92, s92, s96\nv_writelane_b32 v{STV[KIDX[0]]}, s92, {4+i}")
def endk(a):
    if STAMP:
        V = STV[KIDX[0]]
        mark(a, 10)
        a("s_waitcnt vmcnt(0)")
        mark(a, 11)
        a(f"""s_memrealtime s[92:93]
        s_getreg_b32 s94, hwreg(HW_REG_HW_ID)
        s_getreg_b32 s95, hwreg(HW_REG_XCC_ID)
        s_mov_b64 exec, 0xffff
        s_lshl_b32 s88, s2, 3
        s_add_u32 s88, s88, s89
        s_lshl_b32 s88, s88, 6
        s_add_u32 s88, s88, {WS_ST + KIDX[0]*0x40000}
        v_mbcnt_lo_u32_b32 v1, -1, 0
        v_lshl_add_u32 v1, v1, 2, s88
        s_waitcnt lgkmcnt(0)
        v_writelane_b32 v{V}, s90, 0
        v_writelane_b32 v{V}, s92, 1
        v_writelane_b32 v{V}, s94, 2
        v_writelane_b32 v{V}, s95, 3
        global_store_dword v1, v{V}, s[8:9]""")
    a("s_endpgm")

K1_D = 4
ROT = 1
EXTRA = 0
SEQ = ''
ROTS = {0: "s_mov_b32 s30, 0",
        1: "s_mul_i32 s30, s20, 3\ns_add_u32 s30, s30, s21",
        5: "s_add_u32 s30, s20, s21\ns_and_b32 s30, s30, 1\ns_mul_i32 s30, s30, 5\ns_and_b32 s31, s2, 3\ns_add_u32 s30, s30, s31\ns_bfe_u32 s31, s2, 0x10002\ns_lshl_b32 s31, s31, 1\ns_add_u32 s30, s30, s31",
        7: "s_add_u32 s30, s20, s21\ns_and_b32 s30, s30, 3\ns_mul_i32 s30, s30, 5\ns_lshr_b32 s30, s30, 1\ns_and_b32 s31, s2, 1\ns_add_u32 s30, s30, s31"}
K1_LDS = K1_D*32768
def gen_k1(a):
    nm = "qkv_kernel"; KIDX[0]=0; khead(a, nm)
    D = K1_D
    a(f"""
    s_load_dwordx4 s[4:7], s[0:1], 0
    s_load_dwordx2 s[8:9], s[0:1], 88
    s_load_dwordx2 s[10:11], s[0:1], 32
    s_load_dwordx2 s[12:13], s[0:1], 64
    s_cmp_ge_u32 s2, 256
    s_cbranch_scc1 K1_END
    s_and_b32 s20, s2, 3
    s_bfe_u32 s22, s2, 0x20003
    s_lshl_b32 s20, s20, 2
    s_add_u32 s20, s20, s22
    s_bfe_u32 s22, s2, 0x10002
    s_lshl_b32 s22, s22, 3
    s_lshr_b32 s21, s2, 5
    s_add_u32 s21, s21, s22
    v_lshrrev_b32 v1, 6, v0
    v_and_b32 v0, 63, v0
    v_readfirstlane_b32 s23, v1      ; wave
    v_readfirstlane_b32 s89, v1
    s_waitcnt lgkmcnt(0)
    """)
    srd(a, 40, 4, 0, 2048*1280)
    a("s_cmp_eq_u32 s21, 15\ns_cbranch_scc1 K1_R")
    a("s_cmp_lt_u32 s23, 4\ns_cbranch_scc1 K1_C")
    srd(a, 44, 6, 0, 640*3840)
    a(f"""
    s_sub_u32 s23, s23, 4
    v_lshrrev_b32 v1, 3, v0          ; l/8
    v_lshrrev_b32 v2, 4, v0          ; l/16
    v_and_b32 v3, 7, v0
    v_xor_b32 v3, v3, v2
    s_lshl_b32 s24, s20, 7
    s_lshr_b32 s25, s23, 1
    s_lshl_b32 s25, s25, 6
    s_add_u32 s24, s24, s25
    s_and_b32 s25, s23, 1
    s_add_u32 s24, s24, s25
    v_lshl_add_u32 v1, v1, 1, s24
    v_mul_u32_u24 v1, 1280, v1
    v_lshl_add_u32 v4, v3, 4, v1     ; vA0
    v_xor_b32 v5, 64, v4             ; vA1
    v_and_b32 v3, 15, v0
    v_lshlrev_b32 v6, 2, v2
    v_xor_b32 v3, v3, v6
    s_lshl_b32 s25, s23, 4
    v_add_u32 v2, s25, v2
    v_mul_u32_u24 v2, 3840, v2
    v_lshl_add_u32 v6, v3, 4, v2
    s_lshl_b32 s25, s21, 8
    v_add_u32 v6, s25, v6            ; vB
    s_lshl_b32 s29, s23, 12
    {ROTS[ROT]}
    s_mul_i32 s31, s30, 26
    s_lshr_b32 s31, s31, 8           ; /10
    s_mul_i32 s31, s31, 10
    s_sub_u32 s30, s30, s31
    """)
    def issue(p):
        slot = p % D
        a(f"s_lshl_b32 s32, s30, 7\ns_mul_i32 s33, s30, {64*3840}")
        a(f"s_add_u32 s30, s30, 1\ns_cmp_eq_u32 s30, 10\ns_cselect_b32 s30, 0, s30")
        for i in range(4):
            a(f"s_add_u32 m0, s29, {slot*32768 + i*1024}")
            if i: a(f"s_add_u32 s32, s32, {16*1280}")
            a(f"buffer_load_dwordx4 v{4+(i&1)}, s[40:43], s32 offen lds")
            a(f"s_add_u32 m0, s29, {slot*32768 + 16384 + i*1024}")
            if i: a(f"s_add_u32 s33, s33, {4*3840}")
            a(f"buffer_load_dwordx4 v6, s[44:47], s33 offen lds")
    issue(0); issue(1)
    for s in range(10):
        a(f"s_waitcnt vmcnt({8 if s < 9 else 0})\ns_barrier")
        if s+2 < 10: issue(s+2)
    endk(a)
    a.label("K1_C")
    srd(a, 48, 8, WS_QKV, SZ_QKV)
    XA=2; WB=10; ST=14; ACC=16; FR=80
    a(f"""
    s_and_b32 s24, s23, 1            ; wm
    s_lshr_b32 s25, s23, 1           ; wn
    v_and_b32 v1, 31, v0             ; l%32
    v_lshrrev_b32 v14, 5, v0         ; hh
    v_bfe_u32 v15, v0, 1, 3
    v_xor_b32 v15, v15, v14
    v_lshlrev_b32 v15, 4, v15
    v_lshl_add_u32 v{XA}, v1, 7, v15
    s_lshl_b32 s26, s24, 13
    v_add_u32 v{XA}, s26, v{XA}
    v_xor_b32 v{XA+1}, 32, v{XA}
    v_xor_b32 v{XA+2}, 64, v{XA}
    v_xor_b32 v{XA+3}, 96, v{XA}
    """)
    for k in range(4): a(f"v_add_u32 v{XA+4+k}, 0x10000, v{XA+k}")
    a(f"""
    v_bfe_u32 v15, v0, 2, 2          ; i/4
    v_lshl_add_u32 v{WB}, v14, 3, v15 ; k_local
    v_lshlrev_b32 v{WB}, 8, v{WB}
    s_lshl_b32 s26, s25, 1
    v_xor_b32 v15, s26, v15          ; cb ^ (i/4)
    v_lshl_add_u32 v{WB}, v15, 6, v{WB}
    v_bfe_u32 v15, v0, 4, 1          ; colhalf
    v_lshl_add_u32 v{WB}, v15, 5, v{WB}
    v_and_b32 v15, 3, v0
    v_lshl_add_u32 v{WB}, v15, 3, v{WB}
    v_add_u32 v{WB}, 16384, v{WB}
    v_xor_b32 v{WB+1}, 64, v{WB}
    v_add_u32 v{WB+2}, 0x10000, v{WB}
    v_add_u32 v{WB+3}, 0x10000, v{WB+1}
    ; store voffset: hh*US + (128m + 64wm + l%32)*8 ; unit base (32n+16wn)*US in s27
    s_mov_b32 s26, {US}
    v_mul_lo_u32 v{ST}, s26, v14
    v_lshl_add_u32 v{ST}, v1, 4, v{ST}
    s_lshl_b32 s26, s20, 10
    s_lshl_b32 s27, s24, 9
    s_add_u32 s26, s26, s27
    v_add_u32 v{ST}, s26, v{ST}
    s_lshl_b32 s27, s21, 1
    s_add_u32 s27, s27, s25
    s_mul_i32 s27, s27, {16*US}
    """)
    def X(buf, rb): return FR + buf*16 + rb*4
    def W(buf, c): return FR + buf*16 + 8 + c*4
    def acc(c, rb): return ACC + (c*2+rb)*16
    def reads(t):
        s, ks = divmod(t, 4); slot = s % D; buf = t % 3
        hi = slot >= 2; so = (slot & 1)*32768
        x = [f"ds_read_b128 {vr(X(buf,rb),4)}, v{XA+ks+(4 if hi else 0)} offset:{so+rb*4096}" for rb in range(2)]
        w = [f"ds_read_b64_tr_b16 {vr(W(buf,c)+2*tt,2)}, v{WB+c+(2 if hi else 0)} offset:{so+(16*ks+4*tt)*256}" for c in range(2) for tt in range(2)]
        return [x[0], w[0], w[1], x[1], w[2], w[3]]
    a("s_barrier"); mark(a,0)
    for r in reads(0) + reads(1): a(r)
    for t in range(40):
        rd = reads(t+2) if t+2 < 40 else []
        a(f"s_waitcnt lgkmcnt({6 if t+1 < 40 else 0})")
        buf = t % 3; n = 0
        for c in range(2):
            for rb in range(2):
                cop = "0" if t == 0 else vr(acc(c,rb),16)
                a(f"v_mfma_f32_32x32x16_bf16 {vr(acc(c,rb),16)}, {vr(W(buf,c),4)}, {vr(X(buf,rb),4)}, {cop}")
                if n == 0 and rd and (t+2) % 4 == 0: a("s_barrier")
                for r in rd[2*n:2*n+2]: a(r)
                n += 1
    mark(a,1)
    a(f"s_nop 7\ns_nop 7\ns_cmp_ge_u32 s21, 5\ns_cbranch_scc1 K1_NOSC")
    a(f"s_mov_b32 s34, {f32(QSCALE)}\ns_mov_b32 s35, s34")
    for i in range(32): a(f"v_pk_mul_f32 {vr(ACC+2*i,2)}, {vr(ACC+2*i,2)}, s[34:35]")
    a.label("K1_NOSC")
    k = 0
    for c in range(2):
        for q in range(4):
            a(f"s_add_u32 s28, s27, {(8*c+2*q)*US}")
            d = FR + 4*k; k += 1
            for rb in range(2):
                b = acc(c,rb)+4*q
                a(f"v_cvt_pk_bf16_f32 v{d+2*rb}, v{b}, v{b+1}\nv_cvt_pk_bf16_f32 v{d+2*rb+1}, v{b+2}, v{b+3}")
            a(f"buffer_store_dwordx4 {vr(d,4)}, v{ST}, s[48:51], s28 offen")
    endk(a)
    a.label("K1_R")
    srd(a, 48, 8, WS_SM, SZ_SM)
    WR=8; WG=28; XR=48
    a(f"""
    v_and_b32 v1, 15, v0             ; j
    v_lshrrev_b32 v2, 4, v0          ; l/16
    v_lshlrev_b32 v3, 4, v1
    s_lshl_b32 s24, s20, 7
    s_lshl_b32 s25, s23, 4
    s_add_u32 s24, s24, s25
    v_add_u32 v4, s24, v2
    v_mul_u32_u24 v4, 1280, v4
    v_add_u32 v4, v4, v3
    """)
    for i in range(5):
        a(f"global_load_dwordx4 {vr(WR+4*i,4)}, v3, s[10:11] offset:{256*i}")
        a(f"global_load_dwordx4 {vr(WG+4*i,4)}, v3, s[12:13] offset:{256*i}")
    for p in range(4):
        a(f"s_mov_b32 s26, {p*5120}")
        for i in range(5):
            a(f"buffer_load_dwordx4 {vr(XR+20*p+4*i,4)}, v4, s[40:43], s26 offen offset:{256*i}")
    AR = [XR, XR+20, XR+40, XR+60]
    for p in range(4):
        a(f"s_waitcnt vmcnt({15-5*p})")
        a("v_mov_b32 v5, 0\nv_mov_b32 v6, 0")
        for i in range(20):
            a(f"v_dot2_f32_bf16 v5, v{XR+20*p+i}, v{WR+i}, v5")
            a(f"v_dot2_f32_bf16 v6, v{XR+20*p+i}, v{WG+i}, v6")
        for sh in (8,4,2,1):
            a(f"v_add_f32_dpp v5, v5, v5 row_ror:{sh} row_mask:0xf bank_mask:0xf")
            a(f"v_add_f32_dpp v6, v6, v6 row_ror:{sh} row_mask:0xf bank_mask:0xf")
        if p == 0:
            a(f"v_mov_b32 v{AR[0]}, v5\nv_mov_b32 v{AR[0]+1}, v6")
        else:
            a(f"v_cmp_eq_u32 vcc, {p}, v1")
            a(f"v_cndmask_b32 v{AR[0]}, v{AR[0]}, v5, vcc\nv_cndmask_b32 v{AR[0]+1}, v{AR[0]+1}, v6, vcc")
    R=AR[0]; G=AR[0]+1
    a(f"""
    v_lshl_add_u32 v2, v1, 2, v2
    v_add_u32 v7, s24, v2
    """)
    rnd_bf16(a, R, R)
    a(f"""
    v_ashrrev_i32 v5, 31, v{R}
    v_or_b32 v5, 0x80000000, v5
    v_xor_b32 v5, v5, v{R}
    v_and_b32 v5, 0xffff0000, v5
    v_sub_u32 v6, 0xffff, v7
    v_or_b32 v5, v5, v6              ; key
    s_mov_b32 s27, {f32(-LOG2E)}
    """)
    rnd_bf16(a, G, G)
    sigmoid(a, G, G, 27)
    rnd_bf16(a, G, G)
    a(f"""
    v_add_u32 v2, s25, v2
    v_lshlrev_b32 v2, 2, v2
    v_lshlrev_b32 v7, 2, v7
    v_cmp_gt_u32 vcc, 4, v1
    s_and_saveexec_b64 s[30:31], vcc
    ds_write_b32 v2, v5
    s_mov_b32 s26, {SM_G}
    buffer_store_dword v{G}, v7, s[48:51], s26 offen
    s_mov_b64 exec, s[30:31]
    s_waitcnt lgkmcnt(0)
    s_barrier
    s_cmp_lg_u32 s23, 0
    s_cbranch_scc1 K1_END2
    v_lshlrev_b32 v2, 3, v0
    ds_read_b64 v[4:5], v2
    s_waitcnt lgkmcnt(0)
    """)
    top8(a, 4, 5, 6, 56)
    for r in range(8): a(f"v_mov_b32 v{8+r}, s{56+r}")
    a(f"""
    s_lshl_b32 s26, s20, 5
    v_mov_b32 v2, s26
    v_cmp_eq_u32 vcc, 0, v0
    s_and_saveexec_b64 s[30:31], vcc
    buffer_store_dwordx4 v[8:11], v2, s[48:51], 0 offen offset:{SM_CAND}
    buffer_store_dwordx4 v[12:15], v2, s[48:51], 0 offen offset:{SM_CAND+16}
    """)
    a.label("K1_END2")
    endk(a)
    a.label("K1_END")
    a("s_endpgm")
    return nm, 128

NMOE = 48
UV = 4128; VB = 24576
K2_LDS = 76*1024
def gen_k2(a):
    nm = "attn_kernel"; KIDX[0]=1; khead(a, nm)
    a(f"""
    s_load_dwordx2 s[8:9], s[0:1], 88
    s_load_dwordx2 s[4:5], s[0:1], 0
    s_load_dwordx4 s[12:15], s[0:1], 40
    s_load_dwordx2 s[16:17], s[0:1], 56
    s_cmp_ge_u32 s2, {256+NMOE}
    s_cbranch_scc1 K2_END
    v_lshrrev_b32 v1, 6, v0
    v_lshlrev_b32 v2, 3, v0          ; tid*8
    v_and_b32 v0, 63, v0
    v_readfirstlane_b32 s23, v1      ; wave
    v_readfirstlane_b32 s89, v1
    s_cmp_lt_u32 s2, {NMOE}
    s_cbranch_scc1 K2_MOE
    s_sub_u32 s20, s2, {NMOE}
    s_and_b32 s21, s20, 7
    s_lshl_b32 s21, s21, 2
    s_lshr_b32 s22, s20, 6
    s_add_u32 s21, s21, s22
    s_bfe_u32 s20, s20, 0x30003      ; c = (id>>3)&7
    s_waitcnt lgkmcnt(0)
    """)
    mark(a,6)
    srd(a, 40, 8, WS_QKV, SZ_QKV)
    KA0=3; KA1=4; VA=5; Q0=6; Q1=10; KF=12; VF=24; S0=40; P=72; CM=80; O=96; T=112
    a(f"""
    s_and_b32 s24, s23, 3
    s_lshr_b32 s25, s23, 2
    s_lshl_b32 s26, s20, 1
    s_add_u32 s26, s26, s24
    s_lshl_b32 s27, s26, 10
    s_sub_u32 s27, s27, 2048
    s_cmp_lt_u32 s26, 2
    s_cselect_b32 s27, 0x40000000, s27
    v_lshl_add_u32 v{T}, v0, 4, s27
    s_mul_i32 s28, s21, {5*US}       ; 5h*US
    s_mul_i32 s29, s25, {160*US}
    s_add_u32 s29, s29, s28
    s_add_u32 s29, s29, {160*US}
    s_mul_i32 s30, s25, {VB}
    s_lshl_b32 s31, s24, 10
    s_add_u32 s30, s30, s31
    s_lshl_b32 s31, s25, 5
    s_add_u32 s31, s31, 4096
    """)
    for u in range(5):
        a(f"s_mov_b32 m0, s30")
        a(f"buffer_load_dwordx4 v{T}, s[40:43], s29 offen lds")
        if u < 4: a(f"s_add_u32 s30, s30, s31\ns_add_u32 s29, s29, {US}")
    mark(a,2)
    a(f"""
    v_and_b32 v1, 31, v0             ; i = l%32
    v_lshrrev_b32 v{T+1}, 5, v0      ; hh
    s_mov_b32 s29, {2*US}
    v_mul_lo_u32 v{T+2}, s29, v{T+1}
    s_lshl_b32 s29, s20, 3
    s_add_u32 s29, s29, s23
    s_lshl_b32 s29, s29, 8           ; (8c+w)*32*8
    v_lshl_add_u32 v{T+3}, v1, 3, s29 ; token*8
    v_add_u32 v{T+2}, v{T+2}, v{T+3}
    s_add_u32 s29, s28, {US}
    s_add_u32 s30, s28, {4*US}
    buffer_load_dwordx2 {vr(Q0,2)}, v{T+2}, s[40:43], s28 offen
    buffer_load_dwordx2 {vr(Q0+2,2)}, v{T+2}, s[40:43], s29 offen
    buffer_load_dwordx2 {vr(Q1,2)}, v{T+3}, s[40:43], s30 offen
    """)
    a(f"""
    s_cmp_eq_u32 s20, 0
    s_cselect_b32 s29, 0xf149, 0
    s_cmp_lt_u32 s23, 4
    s_cselect_b32 s29, s29, 0
    v_mov_b32 v{S0}, s29
    v_mov_b32 v{S0+1}, 0
    v_mov_b32 v{S0+2}, 0x3f803f80
    v_mov_b32 v{S0+3}, 0x3f803f80
    ds_write_b64 v2, {vr(S0,2)} offset:{5*4096}
    ds_write_b64 v2, {vr(S0+2,2)} offset:{VB+5*UV}
    ; addresses
    s_lshl_b32 s29, s23, 8           ; w*32*8
    v_lshl_add_u32 v{KA1}, v1, 3, s29
    v_lshl_add_u32 v{KA0}, v{T+1}, 13, v{KA1}
    v_lshl_add_u32 v{KA1}, v{T+1}, 12, v{KA1}
    v_bfe_u32 v{VA}, v0, 4, 1        ; dhalf
    v_and_b32 v{T+4}, 3, v0
    v_lshl_add_u32 v{VA}, v{VA}, 2, v{T+4}
    v_min_u32 v{VA}, 5, v{VA}
    v_mul_u32_u24 v{VA}, {UV}, v{VA}
    v_bfe_u32 v{T+4}, v0, 2, 2       ; r
    v_lshl_add_u32 v{T+4}, v{T+1}, 2, v{T+4}
    v_lshl_add_u32 v{VA}, v{T+4}, 3, v{VA}
    v_add_u32 v{VA}, s29, v{VA}
    ; masks
    v_lshlrev_b32 v{T+4}, 2, v{T+1}
    v_sub_u32 v{T+4}, v1, v{T+4}     ; i-4hh
    v_mov_b32 v{T+5}, {f32(NEGBIG)}
    """)
    MK = 56
    for r in range(16):
        a(f"v_cmp_le_i32 {sr(MK+2*r,2)}, {8*(r//4)+r%4}, v{T+4}")
    srd(a, 44, 8, WS_O, SZ_O)
    mark(a,3)
    a("s_waitcnt vmcnt(0)")
    mark(a,4)
    a(f"""
    v_cmp_eq_u32 vcc, 0, v{T+1}
    v_mov_b32 v{T+6}, 0x3f80
    s_waitcnt vmcnt(0)
    v_cndmask_b32 v{Q1}, v{T+6}, v{Q1}, vcc
    v_cndmask_b32 v{Q1+1}, 0, v{Q1+1}, vcc
    s_waitcnt lgkmcnt(0)
    s_barrier
    """)
    mark(a,0)
    NEG = T+5; M = T+6
    def Sb(u): return S0 + 16*(u & 1)
    def Kb(u): return KF + 6*(u & 1)
    def Vb(u): return VF + 8*(u & 1)
    def kreads(u):
        b = u % 9
        a(f"ds_read_b64 {vr(Kb(u),2)}, v{KA0} offset:{b*256}")
        a(f"ds_read_b64 {vr(Kb(u)+2,2)}, v{KA0} offset:{4096+b*256}")
        a(f"ds_read_b64 {vr(Kb(u)+4,2)}, v{KA1} offset:{16384+b*256}")
    def vreads(u):
        b = u % 9
        for j in range(4):
            a(f"ds_read_b64_tr_b16 {vr(Vb(u)+2*j,2)}, v{VA} offset:{VB+b*256+j*64}")
    def maskinit(u):
        b = u % 9; good = "0" if u < 9 else f"v{CM}"
        for r in range(16):
            if b == 8: a(f"v_cndmask_b32 v{Sb(u)+r}, v{NEG}, {good}, {sr(MK+2*r,2)}")
            else:      a(f"v_cndmask_b32 v{Sb(u)+r}, {good}, v{NEG}, {sr(MK+2*r,2)}")
    def qk0(u):
        b = u % 9
        c = vr(Sb(u),16) if b in (0,8) else ("0" if u < 9 else vr(CM,16))
        return f"v_mfma_f32_32x32x16_bf16 {vr(Sb(u),16)}, {vr(Kb(u),4)}, {vr(Q0,4)}, {c}"
    def qk1(u):
        return f"v_mfma_f32_32x32x8_bf16 {vr(Sb(u),16)}, {vr(Kb(u)+4,2)}, {vr(Q1,2)}, {vr(Sb(u),16)}"
    kreads(0); kreads(1); maskinit(0)
    a(f"v_mov_b32 v{M}, v{NEG}")
    a("s_waitcnt lgkmcnt(3)"); a(qk0(0)); a(qk1(0))
    for u in range(9):
        if u < 8:
            if u+1 == 8: maskinit(8)
            a("s_waitcnt lgkmcnt(0)")
            a(qk0(u+1)); a(qk1(u+1))
        kreads(u+2)
        if u == 8: vreads(9)
        for r in range(8):
            a(f"v_max3_f32 v{M}, v{Sb(u)+2*r}, v{Sb(u)+2*r+1}, v{M}")
    a(f"""
    v_mov_b32 v{T+7}, v{M}
    v_permlane32_swap_b32 v{M}, v{T+7}
    v_max_f32 v{M}, v{M}, v{T+7}
    """)
    for r in range(16): a(f"v_sub_f32 v{CM+r}, 0, v{M}")
    maskinit(9)
    mark(a,5)
    a("s_waitcnt lgkmcnt(7)"); a(qk0(9)); a(qk1(9))
    for u in range(9, 18):
        S = Sb(u); last = (u == 17)
        ex = [f"v_exp_f32 v{S+r}, v{S+r}" for r in range(16)]
        cv = [f"v_cvt_pk_bf16_f32 v{P+r}, v{S+2*r}, v{S+2*r+1}" for r in range(8)]
        if not last:
            if u+1 == 17: maskinit(17)
            a("s_waitcnt lgkmcnt(4)")
            a(qk0(u+1))
        for r in range(4): a(ex[r])
        if not last: a(qk1(u+1))
        if u+2 < 18: kreads(u+2)
        if not last: vreads(u+1)
        for r in range(4, 9): a(ex[r])
        for r in range(4): a(cv[r])
        for r in range(9, 12): a(ex[r])
        nout = (3 if u+2 < 18 else 0) + (0 if last else 4)
        a(f"s_waitcnt lgkmcnt({nout})")
        oc = "0" if u == 9 else vr(O,16)
        a(f"v_mfma_f32_32x32x16_bf16 {vr(O,16)}, {vr(Vb(u),4)}, {vr(P,4)}, {oc}")
        for r in range(12, 16): a(ex[r])
        for r in range(4, 8): a(cv[r])
        a(f"v_mfma_f32_32x32x16_bf16 {vr(O,16)}, {vr(Vb(u)+4,4)}, {vr(P+4,4)}, {vr(O,16)}")
    mark(a,1)
    a(f"""
    s_mov_b32 s29, {US}
    v_mul_lo_u32 v{T+2}, s29, v{T+1}
    v_add_u32 v{T+2}, v{T+2}, v{T+3}
    v_lshl_or_b32 v{T+3}, v{T+1}, 30, v{T+3}
    s_add_u32 s29, s28, {2*US}
    v_rcp_f32 v{T}, v{O+12}
    """)
    for r in range(12): a(f"v_mul_f32 v{O+r}, v{O+r}, v{T}")
    for r in range(6): a(f"v_cvt_pk_bf16_f32 v{P+r}, v{O+2*r}, v{O+2*r+1}")
    a(f"""
    buffer_store_dwordx2 {vr(P,2)}, v{T+2}, s[44:47], s28 offen
    buffer_store_dwordx2 {vr(P+2,2)}, v{T+2}, s[44:47], s29 offen
    buffer_store_dwordx2 {vr(P+4,2)}, v{T+3}, s[44:47], s30 offen
    """)
    endk(a)
    a.label("K2_MOE")
    HB = 0; RED = 2048; WD = RED + 32768
    L=16; XF=96; AC=L
    a(f"""
    s_cmp_ge_u32 s2, 24
    s_cselect_b32 s21, 1, 0          ; half
    s_cselect_b32 s20, 24, 0
    s_sub_u32 s20, s2, s20
    s_waitcnt lgkmcnt(0)
    """)
    srd(a, 40, 8, WS_SM, SZ_SM)
    srd(a, 44, 16, 0, 1536*1280)
    srd(a, 48, 4, 0, 2048*1280)
    a(f"""
    v_lshlrev_b32 v1, 3, v0
    buffer_load_dwordx2 v[4:5], v1, s[40:43], 0 offen offset:{SM_CAND}
    v_bfe_u32 v1, v0, 3, 1           ; mat
    v_cmp_eq_u32 vcc, 0, v1
    v_mov_b32 v6, s14
    v_mov_b32 v7, s15
    v_mov_b32 v8, s12
    v_mov_b32 v9, s13
    v_cndmask_b32 v6, v6, v8, vcc
    v_cndmask_b32 v7, v7, v9, vcc
    v_lshrrev_b32 v3, 4, v0          ; g
    s_mul_i32 s24, s23, 80
    v_lshl_add_u32 v8, v3, 2, s24    ; 80w + 4g
    v_mul_u32_u24 v9, 3072, v8
    v_and_b32 v10, 7, v0             ; c
    v_lshl_add_u32 v9, v10, 4, v9
    s_lshl_b32 s25, s20, 7
    v_add_u32 v9, s25, v9
    v_add_co_u32 v6, vcc, v6, v9
    v_addc_co_u32 v7, vcc, 0, v7, vcc
    s_mov_b32 s26, {2*3072}
    s_mov_b32 s27, 0
    s_mov_b32 s28, {14*3072}
    s_mov_b32 s29, 0
    """)
    for b in range(5):
        for i in range(4):
            a(f"global_load_dwordx4 {vr(L+16*b+4*i,4)}, v[6:7], off offset:{(i&1)*3072}")
            if i == 1: a("v_lshl_add_u64 v[6:7], v[6:7], 0, s[26:27]")
            if i == 3 and b < 4: a("v_lshl_add_u64 v[6:7], v[6:7], 0, s[28:29]")
    a(f"""
    s_lshl_b32 s24, s20, 6
    s_lshl_b32 s25, s23, 3
    s_add_u32 s24, s24, s25
    s_mul_i32 s24, s24, 1280
    s_mul_i32 s25, s21, 640
    s_add_u32 s24, s24, s25          ; soffset
    s_mul_i32 s25, s23, 5120
    s_add_u32 s25, s25, {WD}
    """)
    for i in range(5):
        a(f"""
        v_add_u32 v11, {64*i}, v0
        v_mul_u32_u24 v12, 1639, v11
        v_lshrrev_b32 v12, 16, v12       ; row = L/40
        v_mul_u32_u24 v13, 40, v12
        v_sub_u32 v11, v11, v13          ; pos
        v_and_b32 v13, 6, v12
        v_xor_b32 v11, v11, v13          ; chunk
        v_mul_u32_u24 v12, 1280, v12
        v_lshl_add_u32 v11, v11, 4, v12
        s_add_u32 m0, s25, {1024*i}
        buffer_load_dwordx4 v11, s[44:47], s24 offen lds
        """)
    mark(a,2)
    a("s_waitcnt vmcnt(25)")
    mark(a,3)
    top8(a, 4, 5, 11, 56)
    mark(a,0)
    a(f"v_mov_b32 v4, s56")
    for r in range(1, 8):
        a(f"v_cmp_eq_u32 vcc, {r}, v10\nv_mov_b32 v5, s{56+r}\nv_cndmask_b32 v4, v4, v5, vcc")
    a(f"""
    v_and_b32 v5, 0xffff, v4
    v_sub_u32 v5, 0xffff, v5         ; idx
    v_mul_u32_u24 v5, 1280, v5
    v_lshl_add_u32 v5, v8, 1, v5     ; + (80w+4g)*2
    """)
    for b in range(5):
        a(f"buffer_load_dwordx2 {vr(XF+2*b,2)}, v5, s[48:51], 0 offen offset:{32*b}")
    a(f"""
    s_or_b32 s24, s2, s23
    s_cmp_lg_u32 s24, 0
    s_cbranch_scc1 K2_NOSEL
    v_lshlrev_b32 v11, 2, v0
    v_cmp_gt_u32 vcc, 8, v0
    s_and_saveexec_b64 s[30:31], vcc
    buffer_store_dword v4, v11, s[40:43], 0 offen offset:{SM_SEL}
    s_mov_b64 exec, s[30:31]
    """)
    a.label("K2_NOSEL")
    a("s_mov_b32 s24, 0x05040100\ns_mov_b32 s25, 0x07060302\ns_waitcnt vmcnt(0)")
    mark(a,1)
    TP = 106
    ACC = [None]*8
    def perm(b, j, d):
        q = j//2; sel = 24 + (j & 1)
        a(f"v_perm_b32 v{d}, v{L+16*b+4+q}, v{L+16*b+q}, s{sel}")
        a(f"v_perm_b32 v{d+1}, v{L+16*b+12+q}, v{L+16*b+8+q}, s{sel}")
    for j in range(8): perm(0, j, TP+2*j)
    for j in range(4): ACC[j] = L+4*j
    for j in range(4): a(f"v_mfma_f32_16x16x16_bf16 {vr(ACC[j],4)}, {vr(XF,2)}, {vr(TP+2*j,2)}, 0")
    for j in range(4): perm(1, j, TP+2*j)
    for j in range(4): a(f"v_mfma_f32_16x16x16_bf16 {vr(ACC[j],4)}, {vr(XF+2,2)}, {vr(TP+2*j,2)}, {vr(ACC[j],4)}")
    for j in range(4, 8): perm(1, j, TP+2*(j-4))
    for j in range(4, 8): ACC[j] = L+16+4*(j-4)
    for j in range(4, 8): a(f"v_mfma_f32_16x16x16_bf16 {vr(ACC[j],4)}, {vr(XF,2)}, {vr(TP+2*j,2)}, 0")
    for j in range(4, 8): a(f"v_mfma_f32_16x16x16_bf16 {vr(ACC[j],4)}, {vr(XF+2,2)}, {vr(TP+2*(j-4),2)}, {vr(ACC[j],4)}")
    for b in range(2, 5):
        for j in range(8): perm(b, j, TP+2*j)
        for j in range(8): a(f"v_mfma_f32_16x16x16_bf16 {vr(ACC[j],4)}, {vr(XF+2*b,2)}, {vr(TP+2*j,2)}, {vr(ACC[j],4)}")
    mark(a,4)
    a(f"""
    v_and_b32 v11, 15, v0
    v_lshlrev_b32 v11, 5, v11
    v_lshl_add_u32 v11, v3, 4, v11
    s_lshl_b32 s26, s23, 12
    v_add_u32 v11, s26, v11
    s_mov_b32 exec_hi, 0
    """)
    for j in range(8): a(f"ds_write_b128 v11, {vr(ACC[j],4)} offset:{RED+512*j}")
    a(f"""
    s_mov_b64 exec, -1
    s_lshl_b32 s26, s23, 9
    s_add_u32 s26, s26, {RED}
    v_lshl_add_u32 v11, v0, 2, s26
    s_waitcnt lgkmcnt(0)
    s_barrier
    """)
    mark(a,5)
    for w in range(8): a(f"ds_read2st64_b32 {vr(48+2*w,2)}, v11 offset0:{16*w} offset1:{16*w+1}")
    a(f"s_mov_b32 s27, {f32(-LOG2E)}\ns_waitcnt lgkmcnt(0)")
    for w in range(1, 8): a(f"v_pk_add_f32 v[48:49], v[48:49], {vr(48+2*w,2)}")
    rnd_bf16(a, 48, 48); rnd_bf16(a, 49, 49)
    sigmoid(a, 50, 48, 27)
    a("v_mul_f32 v48, v48, v50"); rnd_bf16(a, 48, 48)
    a(f"""
    v_mul_f32 v48, v48, v49
    v_cvt_pk_bf16_f32 v48, v48, v48
    ; hbuf[t][f=8c+j], t = l%8, c = l/8, row stride 144
    v_mul_u32_u24 v11, 144, v10
    v_lshrrev_b32 v12, 3, v0
    v_lshl_add_u32 v12, v12, 4, v11
    s_lshl_b32 s26, s23, 1
    v_add_u32 v12, s26, v12
    ds_write_b16 v12, v48 offset:{HB}
    v_lshl_add_u32 v11, v3, 3, v11
    ; w_down tr address: row = 4g + i/4 ; chunk = 2cg + (i%4)/2 ; pos = chunk ^ (row & 6)
    v_bfe_u32 v12, v0, 2, 2
    v_lshl_add_u32 v12, v3, 2, v12   ; row
    v_and_b32 v13, 6, v12
    s_lshl_b32 s26, s23, 1
    v_xor_b32 v13, s26, v13
    v_lshlrev_b32 v13, 4, v13
    v_mul_u32_u24 v12, 640, v12
    v_add_u32 v12, v12, v13
    v_and_b32 v13, 3, v0
    v_lshl_add_u32 v12, v13, 3, v12
    v_add_u32 v12, {WD}, v12
    ; store offset: ((js*8+t)*640 + half*320 + 16w + 4g)*4 ; lanes with l%16>=8 out of range
    v_mul_u32_u24 v13, 2560, v10
    v_lshl_add_u32 v13, v3, 4, v13
    v_lshl_or_b32 v13, v1, 30, v13
    s_mul_i32 s26, s20, {8*2560}
    s_mul_i32 s28, s21, 1280
    s_add_u32 s26, s26, s28
    s_lshl_b32 s28, s23, 6
    s_add_u32 s26, s26, s28
    s_add_u32 s26, s26, {SM_YP}
    s_waitcnt lgkmcnt(0)
    s_barrier
    """)
    mark(a,6)
    for s_ in range(2):
        for t in range(2):
            a(f"ds_read_b64 {vr(16+4*s_+2*t,2)}, v11 offset:{HB+64*s_+32*t}")
    for i in range(3):
        if i == 2: a("s_cmp_ge_u32 s23, 4\ns_cbranch_scc1 K2_END2")
        for s_ in range(2):
            for t in range(2):
                a(f"ds_read_b64_tr_b16 {vr(24+8*i+4*s_+2*t,2)}, v12 offset:{(32*s_+16*t)*640+256*i}")
        a("s_waitcnt lgkmcnt(0)")
        d = 48+4*i
        a(f"v_mfma_f32_16x16x32_bf16 {vr(d,4)}, {vr(24+8*i,4)}, v[16:19], 0")
        a(f"v_mfma_f32_16x16x32_bf16 {vr(d,4)}, {vr(24+8*i+4,4)}, v[20:23], {vr(d,4)}")
        a(f"buffer_store_dwordx4 {vr(d,4)}, v13, s[40:43], s26 offen offset:{512*i}")
    a.label("K2_END2")
    endk(a)
    a.label("K2_END")
    a("s_endpgm")
    return nm, 128

K3_YB = 0; K3_RED = 3072; K3_WO = K3_RED + 4*5*1024
K3_LDS = K3_WO + 640*160
def gen_k3(a):
    nm = "oproj_kernel"; KIDX[0]=2; khead(a, nm)
    a(f"""
    s_load_dwordx2 s[8:9], s[0:1], 88
    s_load_dwordx2 s[4:5], s[0:1], 0
    s_load_dwordx2 s[6:7], s[0:1], 16
    s_load_dwordx2 s[10:11], s[0:1], 72
    s_cmp_ge_u32 s2, 256
    s_cbranch_scc1 K3_END
    s_and_b32 s20, s2, 7
    s_lshr_b32 s21, s2, 3
    s_and_b32 s22, s21, 3
    s_lshl_b32 s20, s20, 2
    s_add_u32 s20, s20, s22          ; rb
    s_lshr_b32 s21, s21, 2           ; cb
    v_lshrrev_b32 v1, 6, v0
    v_and_b32 v0, 63, v0
    v_readfirstlane_b32 s23, v1
    v_readfirstlane_b32 s89, v1
    s_waitcnt lgkmcnt(0)
    s_add_u32 s12, s8, {WS_SM}
    s_addc_u32 s13, s9, 0
    s_load_dwordx8 s[56:63], s[12:13], {SM_SEL}
    """)
    mark(a,2)
    srd(a, 40, 6, 0, 640*1280)
    srd(a, 44, 8, WS_O, SZ_O)
    OF=16; ACC=56; WF=76; XV=100; T=106
    a(f"""
    v_mul_u32_u24 v1, 26, v0
    v_lshrrev_b32 v1, 8, v1          ; l/10
    v_mul_u32_u24 v2, 10, v1
    v_sub_u32 v2, v0, v2
    v_mul_u32_u24 v1, 1280, v1
    v_lshl_add_u32 v1, v2, 4, v1
    s_mul_i32 s24, s23, {80*1280}
    s_mul_i32 s25, s21, 160
    s_add_u32 s24, s24, s25
    s_mul_i32 s26, s23, {80*160}
    s_mov_b32 exec_hi, 0x3ffff
    """)
    for i in range(16):
        a(f"s_add_u32 m0, s26, {K3_WO+800*i}")
        a(f"buffer_load_dwordx4 v1, s[40:43], s24 offen lds")
        if i < 15: a(f"s_add_u32 s24, s24, {5*1280}")
    a(f"""
    s_mov_b64 exec, -1
    s_and_b32 s24, s23, 3            ; tg
    s_lshr_b32 s27, s23, 2           ; kh
    v_and_b32 v2, 15, v0
    v_lshrrev_b32 v3, 4, v0          ; g
    s_lshl_b32 s28, s20, 6
    s_lshl_b32 s29, s24, 4
    s_add_u32 s29, s29, s28
    v_add_u32 v4, s29, v2
    v_mul_u32_u24 v5, {US}, v3
    v_lshl_add_u32 v5, v4, 3, v5
    s_mul_i32 s30, s27, {80*US}
    """)
    for s_ in range(10):
        for t in range(2):
            a(f"buffer_load_dwordx2 {vr(OF+4*s_+2*t,2)}, v5, s[44:47], s30 offen")
            if not (s_ == 9 and t == 1): a(f"s_add_u32 s30, s30, {4*US}")
    mark(a,3)
    srd(a, 48, 4, 0, 2048*1280)
    srd(a, 52, 8, WS_SM, SZ_SM)
    srd(a, 64, 10, 0, 2048*1280)
    a(f"""
    v_mul_u32_u24 v6, 1280, v4
    v_lshl_add_u32 v6, v3, 3, v6
    s_mul_i32 s31, s27, 96
    s_add_u32 s31, s31, s25
    v_lshlrev_b32 v7, 2, v4
    s_mov_b32 s32, {SM_G}
    buffer_load_dword v{T}, v7, s[52:55], s32 offen
    """)
    for i in range(3):
        a(f"buffer_load_dwordx2 {vr(XV+2*i,2)}, v6, s[48:51], s31 offen offset:{32*i}")
    a(f"""
    v_lshlrev_b32 v8, 3, v0
    v_mov_b32 v10, 0
    v_mov_b32 v11, 0
    s_mov_b32 exec_hi, 0xff
    ds_write_b64 v8, v[10:11] offset:{K3_YB+8*320}
    s_mov_b64 exec, -1
    v_mov_b32 v9, 8
    s_waitcnt lgkmcnt(0)
    """)
    for t in range(8):
        a(f"""
        s_andn2_b32 s33, 0xffff, s{56+t}
        s_cmp_eq_u32 s23, {t}
        s_cselect_b32 s34, s{56+t}, s34
        v_cmp_ne_u32 vcc, s33, v4
        v_cndmask_b32 v9, {t}, v9, vcc
        """)
    a(f"""
    v_mul_u32_u24 v9, 320, v9
    v_lshl_add_u32 v9, v3, 4, v9
    s_mul_i32 s33, s27, 192
    v_add_u32 v9, s33, v9
    s_andn2_b32 s33, 0xffff, s34
    s_sub_u32 s33, s33, s28
    s_cmp_ge_u32 s33, 64
    s_cbranch_scc1 K3_NOY
    s_mul_i32 s33, s23, 2560
    s_lshl_b32 s35, s25, 1
    s_add_u32 s33, s33, s35
    s_add_u32 s33, s33, {SM_YP}
    s_mov_b32 exec_hi, 0xff
    """)
    YT = ACC
    for half in range(2):
        for p in range(12):
            a(f"buffer_load_dwordx2 {vr(YT+2*p,2)}, v8, s[52:55], s33 offen")
            a(f"s_add_u32 s33, s33, {8*2560}")
        a("s_waitcnt vmcnt(0)")
        for p in range(12): a(f"v_pk_add_f32 v[10:11], v[10:11], {vr(YT+2*p,2)}")
    a(f"""
    s_ashr_i32 s35, s34, 31
    s_not_b32 s35, s35
    s_or_b32 s35, s35, 0x80000000
    s_xor_b32 s35, s35, s34
    s_and_b32 s35, s35, 0xffff0000
    v_mov_b32 v12, s35
    s_mov_b32 s36, {f32(-LOG2E)}
    """)
    sigmoid(a, 12, 12, 36); rnd_bf16(a, 12, 12)
    rnd_bf16(a, 10, 10); rnd_bf16(a, 11, 11)
    a("v_mul_f32 v10, v10, v12\nv_mul_f32 v11, v11, v12")
    rnd_bf16(a, 10, 10); rnd_bf16(a, 11, 11)
    a(f"""
    s_mul_i32 s33, s23, 320
    v_add_u32 v8, s33, v8
    ds_write_b64 v8, v[10:11] offset:{K3_YB}
    s_mov_b64 exec, -1
    """)
    a.label("K3_NOY")
    mark(a,4)
    a("s_waitcnt vmcnt(0)")
    mark(a,5)
    a(f"""
    ; wo tr address: row = 320kh + 4g + i/4 ; col bytes = (i%4)*8
    v_bfe_u32 v12, v0, 2, 2
    v_lshl_add_u32 v12, v3, 2, v12
    v_mul_u32_u24 v12, 160, v12
    v_and_b32 v13, 3, v0
    v_lshl_add_u32 v12, v13, 3, v12
    s_mul_i32 s33, s27, {320*160}
    s_add_u32 s33, s33, {K3_WO}
    v_add_u32 v12, s33, v12
    s_mul_i32 s33, s24, 5120
    s_add_u32 s33, s33, {K3_RED}
    v_lshl_add_u32 v13, v0, 4, s33
    s_waitcnt vmcnt(0) lgkmcnt(0)
    s_barrier
    """)
    mark(a,0)
    seq = [(s_, cg) for s_ in range(10) for cg in range(5)]
    def rd(n):
        s_, cg = seq[n]; f = WF + 4*(n % 6)
        for t in range(2):
            a(f"ds_read_b64_tr_b16 {vr(f+2*t,2)}, v12 offset:{(32*s_+16*t)*160+32*cg}")
    AH = 5
    for n in range(AH): rd(n)
    for n in range(50):
        s_, cg = seq[n]; f = WF + 4*(n % 6)
        rem = min(50, n+AH) - n - 1
        a(f"s_waitcnt lgkmcnt({2*rem})")
        c = "0" if s_ == 0 else vr(ACC+4*cg,4)
        a(f"v_mfma_f32_16x16x32_bf16 {vr(ACC+4*cg,4)}, {vr(f,4)}, {vr(OF+4*s_,4)}, {c}")
        if n+AH < 50: rd(n+AH)
    mark(a,1)
    a("s_nop 7\ns_cmp_eq_u32 s27, 0\ns_cbranch_scc1 K3_H0")
    def fin(mine, other, lab):
        for cg in other: a(f"ds_write_b128 v13, {vr(ACC+4*cg,4)} offset:{1024*cg}")
        a("s_waitcnt lgkmcnt(0)\ns_barrier")
        mark(a,6)
        for i, cg in enumerate(mine):
            a(f"ds_read_b128 {vr(OF+4*i,4)}, v13 offset:{1024*cg}")
            a(f"ds_read_b128 {vr(OF+12+4*i,4)}, v9 offset:{K3_YB+64*i}")
        a(f"v_sub_f32 v{T+1}, 1.0, v{T}"); rnd_bf16(a, T+1, T+1)
        a("s_waitcnt lgkmcnt(0)")
        for i, cg in enumerate(mine):
            A_ = ACC+4*cg; Y = OF+12+4*i; X = XV+2*i; t = WF
            for e in range(4): a(f"v_add_f32 v{A_+e}, v{A_+e}, v{OF+4*i+e}")
            a(f"v_cvt_pk_bf16_f32 v{t}, v{A_}, v{A_+1}\nv_cvt_pk_bf16_f32 v{t+1}, v{A_+2}, v{A_+3}")
            def unpack(d, s):
                a(f"v_lshlrev_b32 v{d}, 16, v{s}\nv_and_b32 v{d+1}, 0xffff0000, v{s}")
                a(f"v_lshlrev_b32 v{d+2}, 16, v{s+1}\nv_and_b32 v{d+3}, 0xffff0000, v{s+1}")
            def rnd4(r):
                a(f"v_cvt_pk_bf16_f32 v{t}, v{r}, v{r+1}\nv_cvt_pk_bf16_f32 v{t+1}, v{r+2}, v{r+3}")
                unpack(r, t)
            unpack(A_, t)
            for e in range(4): a(f"v_mul_f32 v{A_+e}, v{A_+e}, v{T}")
            rnd4(A_)
            unpack(t+4, X)
            for e in range(4): a(f"v_add_f32 v{Y+e}, v{Y+e}, v{t+4+e}")
            rnd4(Y)
            for e in range(4): a(f"v_mul_f32 v{Y+e}, v{Y+e}, v{T+1}")
            rnd4(Y)
            for e in range(4): a(f"v_add_f32 v{A_+e}, v{A_+e}, v{Y+e}")
            if DELTA:
                for e in range(4): a(f"v_add_f32 v{A_+e}, {f32(DELTA)}, v{A_+e}")
            o = t+8+2*i
            a(f"v_cvt_pk_bf16_f32 v{o}, v{A_}, v{A_+1}\nv_cvt_pk_bf16_f32 v{o+1}, v{A_+2}, v{A_+3}")
            a(f"buffer_store_dwordx2 {vr(o,2)}, v6, s[64:67], s31 offen offset:{32*i}")
        endk(a)
    fin([3,4],[0,1,2],"h1")
    a.label("K3_H0")
    fin([0,1,2],[3,4],"h0")
    a.label("K3_END")
    a("s_endpgm")
    return nm, 112

isr = lambda w: (w>>5)==7 and (w&4)
GROUPS = {0:[("gemm-c",[w for w in range(256) if not isr(w)],[0,1,2,3]),("gemm-l",[w for w in range(256) if not isr(w)],[4,5,6,7]),("r",[w for w in range(256) if isr(w)],[0])],
          1:[("moe",list(range(48)),[0,1,2,3]),("attn",list(range(48,304)),list(range(8)))],
          2:[("op",list(range(256)),list(range(8)))]}
HEADER = open("cdna_kernels/%s.s.ref" % NAME).read().split("; Override launch geometry")[0]

def build():
    a = Asm()
    ks = [gen_k1(a), gen_k2(a), gen_k3(a)]
    launches = [("qkv_kernel",256,512,K1_LDS),("attn_kernel",256+NMOE,512,K2_LDS),("oproj_kernel",256,512,K3_LDS)]
    if EXTRA:
        khead(a, "nop_kernel"); a("s_endpgm"); ks.append(("nop_kernel", 8))
        launches += [("nop_kernel",256,64,0)]*EXTRA
    if SEQ:
        if not EXTRA:
            khead(a, "nop_kernel"); a("s_endpgm"); ks.append(("nop_kernel", 8))
        allk = launches[:3] + [("nop_kernel",256,64,0)]
        launches = [allk[int(c)] for c in SEQ]
        if "3" not in SEQ: launches = launches
    out = HEADER
    for (n,g,b,l) in launches: out += f"; @launch kernel={n} grid=({g},1,1) block=({b},1,1) lds={l}\n"
    out += '.amdgcn_target "amdgcn-amd-amdhsa--gfx950"\n'
    out += a.text()
    for i,(n,v) in enumerate(ks): out += kd(n, max(v, STV[i]+1) if STAMP else v)
    return out

if __name__ == "__main__":
    p = sys.argv[1] if len(sys.argv) > 1 else "cdna_kernels/%s.s" % NAME
    for o in sys.argv[2:]:
        k, v = o.split("="); globals()[k] = eval(v)
    open(p, "w").write(build())
    print("wrote", p)
```

```python
import sys, struct
from asmlib import *

NAME = "gated_mix__sliding_block__moe_arch_mod__prompt"
US = 16640
WS_QKV = 0;          SZ_QKV = 480*US
WS_O   = 0x800000;   SZ_O   = 160*US
WS_SM  = 0xB00000
SM_CAND = 0; SM_SEL = 0x400; SM_G = 0x1000; SM_YP = 0x10000
SZ_SM  = SM_YP + 24*8*640*4
def f32(x): return "0x%08x" % struct.unpack("<I", struct.pack("<f", x))[0]
QSCALE = (20 ** -0.5) * 1.4426950408889634
LOG2E = 1.4426950408889634
NEGBIG = -1.0e30

def srd(a, d, plo, off, size):
    if off:
        a(f"s_add_u32 s{d}, s{plo}, {off}")
        a(f"s_addc_u32 s{d+1}, s{plo+1}, 0")
    else:
        a(f"s_mov_b32 s{d}, s{plo}")
        a(f"s_mov_b32 s{d+1}, s{plo+1}")
    a(f"s_mov_b32 s{d+2}, {size}")
    a(f"s_mov_b32 s{d+3}, 0x20000")

def top8(a, va, vb, vt, sk):
    for r in range(8):
        a(f"v_max_u32 v{vt}, v{va}, v{vb}")
        for sh in (1,2,4,8):
            a(f"v_max_u32_dpp v{vt}, v{vt}, v{vt} row_shr:{sh} row_mask:0xf bank_mask:0xf")
        a(f"v_max_u32_dpp v{vt}, v{vt}, v{vt} row_bcast:15 row_mask:0xa bank_mask:0xf")
        a(f"v_max_u32_dpp v{vt}, v{vt}, v{vt} row_bcast:31 row_mask:0xc bank_mask:0xf")
        a(f"v_readlane_b32 s{sk+r}, v{vt}, 63")
        if r < 7:
            a(f"v_cmp_ne_u32 vcc, s{sk+r}, v{va}")
            a(f"v_cndmask_b32 v{va}, 0, v{va}, vcc")
            a(f"v_cmp_ne_u32 vcc, s{sk+r}, v{vb}")
            a(f"v_cndmask_b32 v{vb}, 0, v{vb}, vcc")

def sigmoid(a, vd, vs, slog):
    a(f"v_mul_f32 v{vd}, s{slog}, v{vs}")
    a(f"v_exp_f32 v{vd}, v{vd}")
    a(f"v_add_f32 v{vd}, 1.0, v{vd}")
    a(f"v_rcp_f32 v{vd}, v{vd}")

def rnd_bf16(a, vd, vs):
    a(f"v_cvt_pk_bf16_f32 v{vd}, v{vs}, v{vs}")
    a(f"v_and_b32 v{vd}, 0xffff0000, v{vd}")

def kd(name, vgpr, sgpr=96):
    if STAMP: sgpr = 102
    acc = (vgpr+3)//4*4
    return f""".section .rodata,"a"
.p2align 6
.amdhsa_kernel {name}
  .amdhsa_next_free_vgpr {vgpr}
  .amdhsa_next_free_sgpr {sgpr}
  .amdhsa_accum_offset {acc}
  .amdhsa_group_segment_fixed_size 0
  .amdhsa_kernarg_size 96
  .amdhsa_user_sgpr_count 2
  .amdhsa_user_sgpr_kernarg_segment_ptr 1
  .amdhsa_system_sgpr_workgroup_id_x 1
.end_amdhsa_kernel
"""

STAMP = False
DELTA = 0.0
WS_ST = 0xC00000
KIDX = [0]
STV = [130, 127, 130]
def khead(a, name):
    a(f".text\n.globl {name}\n.p2align 8\n.type {name},@function")
    a.label(name)
    if STAMP:
        a(f"s_memrealtime s[90:91]\ns_memtime s[96:97]\nv_mov_b32 v{STV[KIDX[0]]}, 0")
def mark(a, i):
    if STAMP:
        a(f"s_memtime s[92:93]\ns_waitcnt lgkmcnt(0)\ns_sub_u32 s92, s92, s96\nv_writelane_b32 v{STV[KIDX[0]]}, s92, {4+i}")
def endk(a):
    if STAMP:
        V = STV[KIDX[0]]
        mark(a, 10)
        a("s_waitcnt vmcnt(0)")
        mark(a, 11)
        a(f"""s_memrealtime s[92:93]
        s_getreg_b32 s94, hwreg(HW_REG_HW_ID)
        s_getreg_b32 s95, hwreg(HW_REG_XCC_ID)
        s_mov_b64 exec, 0xffff
        s_lshl_b32 s88, s2, 3
        s_add_u32 s88, s88, s89
        s_lshl_b32 s88, s88, 6
        s_add_u32 s88, s88, {WS_ST + KIDX[0]*0x40000}
        v_mbcnt_lo_u32_b32 v1, -1, 0
        v_lshl_add_u32 v1, v1, 2, s88
        s_waitcnt lgkmcnt(0)
        v_writelane_b32 v{V}, s90, 0
        v_writelane_b32 v{V}, s92, 1
        v_writelane_b32 v{V}, s94, 2
        v_writelane_b32 v{V}, s95, 3
        global_store_dword v1, v{V}, s[8:9]""")
    a("s_endpgm")

K1_D = 4
ROT = 1
EXTRA = 0
TOUCH = 0
SEQ = ''
ROTS = {0: "s_mov_b32 s30, 0",
        1: "s_mul_i32 s30, s20, 3\ns_add_u32 s30, s30, s21",
        5: "s_add_u32 s30, s20, s21\ns_and_b32 s30, s30, 1\ns_mul_i32 s30, s30, 5\ns_and_b32 s31, s2, 3\ns_add_u32 s30, s30, s31\ns_bfe_u32 s31, s2, 0x10002\ns_lshl_b32 s31, s31, 1\ns_add_u32 s30, s30, s31",
        7: "s_add_u32 s30, s20, s21\ns_and_b32 s30, s30, 3\ns_mul_i32 s30, s30, 5\ns_lshr_b32 s30, s30, 1\ns_and_b32 s31, s2, 1\ns_add_u32 s30, s30, s31"}
K1_LDS = K1_D*32768
def gen_k1(a):
    nm = "qkv_kernel"; KIDX[0]=0; khead(a, nm)
    D = K1_D
    a(f"""
    s_load_dwordx4 s[4:7], s[0:1], 0
    s_load_dwordx2 s[8:9], s[0:1], 88
    s_load_dwordx2 s[10:11], s[0:1], 32
    s_load_dwordx2 s[12:13], s[0:1], 64
    s_cmp_ge_u32 s2, 256
    s_cbranch_scc1 K1_END
    s_and_b32 s20, s2, 3
    s_bfe_u32 s22, s2, 0x20003
    s_lshl_b32 s20, s20, 2
    s_add_u32 s20, s20, s22
    s_bfe_u32 s22, s2, 0x10002
    s_lshl_b32 s22, s22, 3
    s_lshr_b32 s21, s2, 5
    s_add_u32 s21, s21, s22
    v_lshrrev_b32 v1, 6, v0
    v_and_b32 v0, 63, v0
    v_readfirstlane_b32 s23, v1      ; wave
    v_readfirstlane_b32 s89, v1
    s_waitcnt lgkmcnt(0)
    """)
    srd(a, 40, 4, 0, 2048*1280)
    a("s_cmp_eq_u32 s21, 15\ns_cbranch_scc1 K1_R")
    a("s_cmp_lt_u32 s23, 4\ns_cbranch_scc1 K1_C")
    srd(a, 44, 6, 0, 640*3840)
    a(f"""
    s_sub_u32 s23, s23, 4
    v_lshrrev_b32 v1, 3, v0          ; l/8
    v_lshrrev_b32 v2, 4, v0          ; l/16
    v_and_b32 v3, 7, v0
    v_xor_b32 v3, v3, v2
    s_lshl_b32 s24, s20, 7
    s_lshr_b32 s25, s23, 1
    s_lshl_b32 s25, s25, 6
    s_add_u32 s24, s24, s25
    s_and_b32 s25, s23, 1
    s_add_u32 s24, s24, s25
    v_lshl_add_u32 v1, v1, 1, s24
    v_mul_u32_u24 v1, 1280, v1
    v_lshl_add_u32 v4, v3, 4, v1     ; vA0
    v_xor_b32 v5, 64, v4             ; vA1
    v_and_b32 v3, 15, v0
    v_lshlrev_b32 v6, 2, v2
    v_xor_b32 v3, v3, v6
    s_lshl_b32 s25, s23, 4
    v_add_u32 v2, s25, v2
    v_mul_u32_u24 v2, 3840, v2
    v_lshl_add_u32 v6, v3, 4, v2
    s_lshl_b32 s25, s21, 8
    v_add_u32 v6, s25, v6            ; vB
    s_lshl_b32 s29, s23, 12
    {ROTS[ROT]}
    s_mul_i32 s31, s30, 26
    s_lshr_b32 s31, s31, 8           ; /10
    s_mul_i32 s31, s31, 10
    s_sub_u32 s30, s30, s31
    """)
    def issue(p):
        slot = p % D
        a(f"s_lshl_b32 s32, s30, 7\ns_mul_i32 s33, s30, {64*3840}")
        a(f"s_add_u32 s30, s30, 1\ns_cmp_eq_u32 s30, 10\ns_cselect_b32 s30, 0, s30")
        for i in range(4):
            a(f"s_add_u32 m0, s29, {slot*32768 + i*1024}")
            if i: a(f"s_add_u32 s32, s32, {16*1280}")
            a(f"buffer_load_dwordx4 v{4+(i&1)}, s[40:43], s32 offen lds")
            a(f"s_add_u32 m0, s29, {slot*32768 + 16384 + i*1024}")
            if i: a(f"s_add_u32 s33, s33, {4*3840}")
            a(f"buffer_load_dwordx4 v6, s[44:47], s33 offen lds")
    issue(0); issue(1)
    for s in range(10):
        a(f"s_waitcnt vmcnt({8 if s < 9 else 0})\ns_barrier")
        if s+2 < 10: issue(s+2)
    endk(a)
    a.label("K1_C")
    if TOUCH:
        a(f"""
        s_cmp_lg_u32 s23, 0
        s_cbranch_scc1 K1_NOTOUCH
        s_load_dwordx2 s[60:61], s[0:1], 16
        s_load_dwordx4 s[64:67], s[0:1], 40
        s_load_dwordx2 s[68:69], s[0:1], 56
        s_load_dwordx2 s[70:71], s[0:1], 72
        s_lshr_b32 s24, s2, 3
        v_lshl_add_u32 v1, v0, 5, s24
        v_lshlrev_b32 v1, {TOUCH}, v1
        s_waitcnt lgkmcnt(0)
        """)
        for i,(p,sz) in enumerate([(60,640*1280),(64,640*3072),(66,640*3072),(68,1536*1280),(70,2048*1280),(8,WS_SM+SZ_SM)]):
            srd(a, 72, p, 0, sz)
            a(f"buffer_load_dword v{20+i}, v1, s[72:75], 0 offen")
        a.label("K1_NOTOUCH")
    srd(a, 48, 8, WS_QKV, SZ_QKV)
    XA=2; WB=10; ST=14; ACC=16; FR=80
    a(f"""
    s_and_b32 s24, s23, 1            ; wm
    s_lshr_b32 s25, s23, 1           ; wn
    v_and_b32 v1, 31, v0             ; l%32
    v_lshrrev_b32 v14, 5, v0         ; hh
    v_bfe_u32 v15, v0, 1, 3
    v_xor_b32 v15, v15, v14
    v_lshlrev_b32 v15, 4, v15
    v_lshl_add_u32 v{XA}, v1, 7, v15
    s_lshl_b32 s26, s24, 13
    v_add_u32 v{XA}, s26, v{XA}
    v_xor_b32 v{XA+1}, 32, v{XA}
    v_xor_b32 v{XA+2}, 64, v{XA}
    v_xor_b32 v{XA+3}, 96, v{XA}
    """)
    for k in range(4): a(f"v_add_u32 v{XA+4+k}, 0x10000, v{XA+k}")
    a(f"""
    v_bfe_u32 v15, v0, 2, 2          ; i/4
    v_lshl_add_u32 v{WB}, v14, 3, v15 ; k_local
    v_lshlrev_b32 v{WB}, 8, v{WB}
    s_lshl_b32 s26, s25, 1
    v_xor_b32 v15, s26, v15          ; cb ^ (i/4)
    v_lshl_add_u32 v{WB}, v15, 6, v{WB}
    v_bfe_u32 v15, v0, 4, 1          ; colhalf
    v_lshl_add_u32 v{WB}, v15, 5, v{WB}
    v_and_b32 v15, 3, v0
    v_lshl_add_u32 v{WB}, v15, 3, v{WB}
    v_add_u32 v{WB}, 16384, v{WB}
    v_xor_b32 v{WB+1}, 64, v{WB}
    v_add_u32 v{WB+2}, 0x10000, v{WB}
    v_add_u32 v{WB+3}, 0x10000, v{WB+1}
    ; store voffset: hh*US + (128m + 64wm + l%32)*8 ; unit base (32n+16wn)*US in s27
    s_mov_b32 s26, {US}
    v_mul_lo_u32 v{ST}, s26, v14
    v_lshl_add_u32 v{ST}, v1, 4, v{ST}
    s_lshl_b32 s26, s20, 10
    s_lshl_b32 s27, s24, 9
    s_add_u32 s26, s26, s27
    v_add_u32 v{ST}, s26, v{ST}
    s_lshl_b32 s27, s21, 1
    s_add_u32 s27, s27, s25
    s_mul_i32 s27, s27, {16*US}
    """)
    def X(buf, rb): return FR + buf*16 + rb*4
    def W(buf, c): return FR + buf*16 + 8 + c*4
    def acc(c, rb): return ACC + (c*2+rb)*16
    def reads(t):
        s, ks = divmod(t, 4); slot = s % D; buf = t % 3
        hi = slot >= 2; so = (slot & 1)*32768
        x = [f"ds_read_b128 {vr(X(buf,rb),4)}, v{XA+ks+(4 if hi else 0)} offset:{so+rb*4096}" for rb in range(2)]
        w = [f"ds_read_b64_tr_b16 {vr(W(buf,c)+2*tt,2)}, v{WB+c+(2 if hi else 0)} offset:{so+(16*ks+4*tt)*256}" for c in range(2) for tt in range(2)]
        return [x[0], w[0], w[1], x[1], w[2], w[3]]
    a("s_barrier"); mark(a,0)
    for r in reads(0) + reads(1): a(r)
    for t in range(40):
        rd = reads(t+2) if t+2 < 40 else []
        a(f"s_waitcnt lgkmcnt({6 if t+1 < 40 else 0})")
        buf = t % 3; n = 0
        for c in range(2):
            for rb in range(2):
                cop = "0" if t == 0 else vr(acc(c,rb),16)
                a(f"v_mfma_f32_32x32x16_bf16 {vr(acc(c,rb),16)}, {vr(W(buf,c),4)}, {vr(X(buf,rb),4)}, {cop}")
                if n == 0 and rd and (t+2) % 4 == 0: a("s_barrier")
                for r in rd[2*n:2*n+2]: a(r)
                n += 1
    mark(a,1)
    a(f"s_nop 7\ns_nop 7\ns_cmp_ge_u32 s21, 5\ns_cbranch_scc1 K1_NOSC")
    a(f"s_mov_b32 s34, {f32(QSCALE)}\ns_mov_b32 s35, s34")
    for i in range(32): a(f"v_pk_mul_f32 {vr(ACC+2*i,2)}, {vr(ACC+2*i,2)}, s[34:35]")
    a.label("K1_NOSC")
    k = 0
    for c in range(2):
        for q in range(4):
            a(f"s_add_u32 s28, s27, {(8*c+2*q)*US}")
            d = FR + 4*k; k += 1
            for rb in range(2):
                b = acc(c,rb)+4*q
                a(f"v_cvt_pk_bf16_f32 v{d+2*rb}, v{b}, v{b+1}\nv_cvt_pk_bf16_f32 v{d+2*rb+1}, v{b+2}, v{b+3}")
            a(f"buffer_store_dwordx4 {vr(d,4)}, v{ST}, s[48:51], s28 offen")
    endk(a)
    a.label("K1_R")
    srd(a, 48, 8, WS_SM, SZ_SM)
    WR=8; WG=28; XR=48
    a(f"""
    v_and_b32 v1, 15, v0             ; j
    v_lshrrev_b32 v2, 4, v0          ; l/16
    v_lshlrev_b32 v3, 4, v1
    s_lshl_b32 s24, s20, 7
    s_lshl_b32 s25, s23, 4
    s_add_u32 s24, s24, s25
    v_add_u32 v4, s24, v2
    v_mul_u32_u24 v4, 1280, v4
    v_add_u32 v4, v4, v3
    """)
    for i in range(5):
        a(f"global_load_dwordx4 {vr(WR+4*i,4)}, v3, s[10:11] offset:{256*i}")
        a(f"global_load_dwordx4 {vr(WG+4*i,4)}, v3, s[12:13] offset:{256*i}")
    for p in range(4):
        a(f"s_mov_b32 s26, {p*5120}")
        for i in range(5):
            a(f"buffer_load_dwordx4 {vr(XR+20*p+4*i,4)}, v4, s[40:43], s26 offen offset:{256*i}")
    AR = [XR, XR+20, XR+40, XR+60]
    for p in range(4):
        a(f"s_waitcnt vmcnt({15-5*p})")
        a("v_mov_b32 v5, 0\nv_mov_b32 v6, 0")
        for i in range(20):
            a(f"v_dot2_f32_bf16 v5, v{XR+20*p+i}, v{WR+i}, v5")
            a(f"v_dot2_f32_bf16 v6, v{XR+20*p+i}, v{WG+i}, v6")
        for sh in (8,4,2,1):
            a(f"v_add_f32_dpp v5, v5, v5 row_ror:{sh} row_mask:0xf bank_mask:0xf")
            a(f"v_add_f32_dpp v6, v6, v6 row_ror:{sh} row_mask:0xf bank_mask:0xf")
        if p == 0:
            a(f"v_mov_b32 v{AR[0]}, v5\nv_mov_b32 v{AR[0]+1}, v6")
        else:
            a(f"v_cmp_eq_u32 vcc, {p}, v1")
            a(f"v_cndmask_b32 v{AR[0]}, v{AR[0]}, v5, vcc\nv_cndmask_b32 v{AR[0]+1}, v{AR[0]+1}, v6, vcc")
    R=AR[0]; G=AR[0]+1
    a(f"""
    v_lshl_add_u32 v2, v1, 2, v2
    v_add_u32 v7, s24, v2
    """)
    rnd_bf16(a, R, R)
    a(f"""
    v_ashrrev_i32 v5, 31, v{R}
    v_or_b32 v5, 0x80000000, v5
    v_xor_b32 v5, v5, v{R}
    v_and_b32 v5, 0xffff0000, v5
    v_sub_u32 v6, 0xffff, v7
    v_or_b32 v5, v5, v6              ; key
    s_mov_b32 s27, {f32(-LOG2E)}
    """)
    rnd_bf16(a, G, G)
    sigmoid(a, G, G, 27)
    rnd_bf16(a, G, G)
    a(f"""
    v_add_u32 v2, s25, v2
    v_lshlrev_b32 v2, 2, v2
    v_lshlrev_b32 v7, 2, v7
    v_cmp_gt_u32 vcc, 4, v1
    s_and_saveexec_b64 s[30:31], vcc
    ds_write_b32 v2, v5
    s_mov_b32 s26, {SM_G}
    buffer_store_dword v{G}, v7, s[48:51], s26 offen
    s_mov_b64 exec, s[30:31]
    s_waitcnt lgkmcnt(0)
    s_barrier
    s_cmp_lg_u32 s23, 0
    s_cbranch_scc1 K1_END2
    v_lshlrev_b32 v2, 3, v0
    ds_read_b64 v[4:5], v2
    s_waitcnt lgkmcnt(0)
    """)
    top8(a, 4, 5, 6, 56)
    for r in range(8): a(f"v_mov_b32 v{8+r}, s{56+r}")
    a(f"""
    s_lshl_b32 s26, s20, 5
    v_mov_b32 v2, s26
    v_cmp_eq_u32 vcc, 0, v0
    s_and_saveexec_b64 s[30:31], vcc
    buffer_store_dwordx4 v[8:11], v2, s[48:51], 0 offen offset:{SM_CAND}
    buffer_store_dwordx4 v[12:15], v2, s[48:51], 0 offen offset:{SM_CAND+16}
    """)
    a.label("K1_END2")
    endk(a)
    a.label("K1_END")
    a("s_endpgm")
    return nm, 128

NMOE = 48
UV = 4128; VB = 24576
K2_LDS = 76*1024
def gen_k2(a):
    nm = "attn_kernel"; KIDX[0]=1; khead(a, nm)
    a(f"""
    s_load_dwordx2 s[8:9], s[0:1], 88
    s_load_dwordx2 s[4:5], s[0:1], 0
    s_load_dwordx4 s[12:15], s[0:1], 40
    s_load_dwordx2 s[16:17], s[0:1], 56
    s_cmp_ge_u32 s2, {256+NMOE}
    s_cbranch_scc1 K2_END
    v_lshrrev_b32 v1, 6, v0
    v_lshlrev_b32 v2, 3, v0          ; tid*8
    v_and_b32 v0, 63, v0
    v_readfirstlane_b32 s23, v1      ; wave
    v_readfirstlane_b32 s89, v1
    s_cmp_lt_u32 s2, {NMOE}
    s_cbranch_scc1 K2_MOE
    s_sub_u32 s20, s2, {NMOE}
    s_and_b32 s21, s20, 7
    s_lshl_b32 s21, s21, 2
    s_lshr_b32 s22, s20, 6
    s_add_u32 s21, s21, s22
    s_bfe_u32 s20, s20, 0x30003      ; c = (id>>3)&7
    s_waitcnt lgkmcnt(0)
    """)
    mark(a,6)
    srd(a, 40, 8, WS_QKV, SZ_QKV)
    KA0=3; KA1=4; VA=5; Q0=6; Q1=10; KF=12; VF=24; S0=40; P=72; CM=80; O=96; T=112
    a(f"""
    s_and_b32 s24, s23, 3
    s_lshr_b32 s25, s23, 2
    s_lshl_b32 s26, s20, 1
    s_add_u32 s26, s26, s24
    s_lshl_b32 s27, s26, 10
    s_sub_u32 s27, s27, 2048
    s_cmp_lt_u32 s26, 2
    s_cselect_b32 s27, 0x40000000, s27
    v_lshl_add_u32 v{T}, v0, 4, s27
    s_mul_i32 s28, s21, {5*US}       ; 5h*US
    s_mul_i32 s29, s25, {160*US}
    s_add_u32 s29, s29, s28
    s_add_u32 s29, s29, {160*US}
    s_mul_i32 s30, s25, {VB}
    s_lshl_b32 s31, s24, 10
    s_add_u32 s30, s30, s31
    s_lshl_b32 s31, s25, 5
    s_add_u32 s31, s31, 4096
    """)
    for u in range(5):
        a(f"s_mov_b32 m0, s30")
        a(f"buffer_load_dwordx4 v{T}, s[40:43], s29 offen lds")
        if u < 4: a(f"s_add_u32 s30, s30, s31\ns_add_u32 s29, s29, {US}")
    mark(a,2)
    a(f"""
    v_and_b32 v1, 31, v0             ; i = l%32
    v_lshrrev_b32 v{T+1}, 5, v0      ; hh
    s_mov_b32 s29, {2*US}
    v_mul_lo_u32 v{T+2}, s29, v{T+1}
    s_lshl_b32 s29, s20, 3
    s_add_u32 s29, s29, s23
    s_lshl_b32 s29, s29, 8           ; (8c+w)*32*8
    v_lshl_add_u32 v{T+3}, v1, 3, s29 ; token*8
    v_add_u32 v{T+2}, v{T+2}, v{T+3}
    s_add_u32 s29, s28, {US}
    s_add_u32 s30, s28, {4*US}
    buffer_load_dwordx2 {vr(Q0,2)}, v{T+2}, s[40:43], s28 offen
    buffer_load_dwordx2 {vr(Q0+2,2)}, v{T+2}, s[40:43], s29 offen
    buffer_load_dwordx2 {vr(Q1,2)}, v{T+3}, s[40:43], s30 offen
    """)
    a(f"""
    s_cmp_eq_u32 s20, 0
    s_cselect_b32 s29, 0xf149, 0
    s_cmp_lt_u32 s23, 4
    s_cselect_b32 s29, s29, 0
    v_mov_b32 v{S0}, s29
    v_mov_b32 v{S0+1}, 0
    v_mov_b32 v{S0+2}, 0x3f803f80
    v_mov_b32 v{S0+3}, 0x3f803f80
    ds_write_b64 v2, {vr(S0,2)} offset:{5*4096}
    ds_write_b64 v2, {vr(S0+2,2)} offset:{VB+5*UV}
    ; addresses
    s_lshl_b32 s29, s23, 8           ; w*32*8
    v_lshl_add_u32 v{KA1}, v1, 3, s29
    v_lshl_add_u32 v{KA0}, v{T+1}, 13, v{KA1}
    v_lshl_add_u32 v{KA1}, v{T+1}, 12, v{KA1}
    v_bfe_u32 v{VA}, v0, 4, 1        ; dhalf
    v_and_b32 v{T+4}, 3, v0
    v_lshl_add_u32 v{VA}, v{VA}, 2, v{T+4}
    v_min_u32 v{VA}, 5, v{VA}
    v_mul_u32_u24 v{VA}, {UV}, v{VA}
    v_bfe_u32 v{T+4}, v0, 2, 2       ; r
    v_lshl_add_u32 v{T+4}, v{T+1}, 2, v{T+4}
    v_lshl_add_u32 v{VA}, v{T+4}, 3, v{VA}
    v_add_u32 v{VA}, s29, v{VA}
    ; masks
    v_lshlrev_b32 v{T+4}, 2, v{T+1}
    v_sub_u32 v{T+4}, v1, v{T+4}     ; i-4hh
    v_mov_b32 v{T+5}, {f32(NEGBIG)}
    """)
    MK = 56
    for r in range(16):
        a(f"v_cmp_le_i32 {sr(MK+2*r,2)}, {8*(r//4)+r%4}, v{T+4}")
    srd(a, 44, 8, WS_O, SZ_O)
    mark(a,3)
    a("s_waitcnt vmcnt(0)")
    mark(a,4)
    a(f"""
    v_cmp_eq_u32 vcc, 0, v{T+1}
    v_mov_b32 v{T+6}, 0x3f80
    s_waitcnt vmcnt(0)
    v_cndmask_b32 v{Q1}, v{T+6}, v{Q1}, vcc
    v_cndmask_b32 v{Q1+1}, 0, v{Q1+1}, vcc
    s_waitcnt lgkmcnt(0)
    s_barrier
    """)
    mark(a,0)
    NEG = T+5; M = T+6
    def Sb(u): return S0 + 16*(u & 1)
    def Kb(u): return KF + 6*(u & 1)
    def Vb(u): return VF + 8*(u & 1)
    def kreads(u):
        b = u % 9
        a(f"ds_read_b64 {vr(Kb(u),2)}, v{KA0} offset:{b*256}")
        a(f"ds_read_b64 {vr(Kb(u)+2,2)}, v{KA0} offset:{4096+b*256}")
        a(f"ds_read_b64 {vr(Kb(u)+4,2)}, v{KA1} offset:{16384+b*256}")
    def vreads(u):
        b = u % 9
        for j in range(4):
            a(f"ds_read_b64_tr_b16 {vr(Vb(u)+2*j,2)}, v{VA} offset:{VB+b*256+j*64}")
    def maskinit(u):
        b = u % 9; good = "0" if u < 9 else f"v{CM}"
        for r in range(16):
            if b == 8: a(f"v_cndmask_b32 v{Sb(u)+r}, v{NEG}, {good}, {sr(MK+2*r,2)}")
            else:      a(f"v_cndmask_b32 v{Sb(u)+r}, {good}, v{NEG}, {sr(MK+2*r,2)}")
    def qk0(u):
        b = u % 9
        c = vr(Sb(u),16) if b in (0,8) else ("0" if u < 9 else vr(CM,16))
        return f"v_mfma_f32_32x32x16_bf16 {vr(Sb(u),16)}, {vr(Kb(u),4)}, {vr(Q0,4)}, {c}"
    def qk1(u):
        return f"v_mfma_f32_32x32x8_bf16 {vr(Sb(u),16)}, {vr(Kb(u)+4,2)}, {vr(Q1,2)}, {vr(Sb(u),16)}"
    kreads(0); kreads(1); maskinit(0)
    a(f"v_mov_b32 v{M}, v{NEG}")
    a("s_waitcnt lgkmcnt(3)"); a(qk0(0)); a(qk1(0))
    for u in range(9):
        if u < 8:
            if u+1 == 8: maskinit(8)
            a("s_waitcnt lgkmcnt(0)")
            a(qk0(u+1)); a(qk1(u+1))
        kreads(u+2)
        if u == 8: vreads(9)
        for r in range(8):
            a(f"v_max3_f32 v{M}, v{Sb(u)+2*r}, v{Sb(u)+2*r+1}, v{M}")
    a(f"""
    v_mov_b32 v{T+7}, v{M}
    v_permlane32_swap_b32 v{M}, v{T+7}
    v_max_f32 v{M}, v{M}, v{T+7}
    """)
    for r in range(16): a(f"v_sub_f32 v{CM+r}, 0, v{M}")
    maskinit(9)
    mark(a,5)
    a("s_waitcnt lgkmcnt(7)"); a(qk0(9)); a(qk1(9))
    for u in range(9, 18):
        S = Sb(u); last = (u == 17)
        ex = [f"v_exp_f32 v{S+r}, v{S+r}" for r in range(16)]
        cv = [f"v_cvt_pk_bf16_f32 v{P+r}, v{S+2*r}, v{S+2*r+1}" for r in range(8)]
        if not last:
            if u+1 == 17: maskinit(17)
            a("s_waitcnt lgkmcnt(4)")
            a(qk0(u+1))
        for r in range(4): a(ex[r])
        if not last: a(qk1(u+1))
        if u+2 < 18: kreads(u+2)
        if not last: vreads(u+1)
        for r in range(4, 9): a(ex[r])
        for r in range(4): a(cv[r])
        for r in range(9, 12): a(ex[r])
        nout = (3 if u+2 < 18 else 0) + (0 if last else 4)
        a(f"s_waitcnt lgkmcnt({nout})")
        oc = "0" if u == 9 else vr(O,16)
        a(f"v_mfma_f32_32x32x16_bf16 {vr(O,16)}, {vr(Vb(u),4)}, {vr(P,4)}, {oc}")
        for r in range(12, 16): a(ex[r])
        for r in range(4, 8): a(cv[r])
        a(f"v_mfma_f32_32x32x16_bf16 {vr(O,16)}, {vr(Vb(u)+4,4)}, {vr(P+4,4)}, {vr(O,16)}")
    mark(a,1)
    a(f"""
    s_mov_b32 s29, {US}
    v_mul_lo_u32 v{T+2}, s29, v{T+1}
    v_add_u32 v{T+2}, v{T+2}, v{T+3}
    v_lshl_or_b32 v{T+3}, v{T+1}, 30, v{T+3}
    s_add_u32 s29, s28, {2*US}
    v_rcp_f32 v{T}, v{O+12}
    """)
    for r in range(12): a(f"v_mul_f32 v{O+r}, v{O+r}, v{T}")
    for r in range(6): a(f"v_cvt_pk_bf16_f32 v{P+r}, v{O+2*r}, v{O+2*r+1}")
    a(f"""
    buffer_store_dwordx2 {vr(P,2)}, v{T+2}, s[44:47], s28 offen
    buffer_store_dwordx2 {vr(P+2,2)}, v{T+2}, s[44:47], s29 offen
    buffer_store_dwordx2 {vr(P+4,2)}, v{T+3}, s[44:47], s30 offen
    """)
    endk(a)
    a.label("K2_MOE")
    HB = 0; RED = 2048; WD = RED + 32768
    L=16; XF=96; AC=L
    a(f"""
    s_cmp_ge_u32 s2, 24
    s_cselect_b32 s21, 1, 0          ; half
    s_cselect_b32 s20, 24, 0
    s_sub_u32 s20, s2, s20
    s_waitcnt lgkmcnt(0)
    """)
    srd(a, 40, 8, WS_SM, SZ_SM)
    srd(a, 44, 16, 0, 1536*1280)
    srd(a, 48, 4, 0, 2048*1280)
    a(f"""
    v_lshlrev_b32 v1, 3, v0
    buffer_load_dwordx2 v[4:5], v1, s[40:43], 0 offen offset:{SM_CAND}
    v_bfe_u32 v1, v0, 3, 1           ; mat
    v_cmp_eq_u32 vcc, 0, v1
    v_mov_b32 v6, s14
    v_mov_b32 v7, s15
    v_mov_b32 v8, s12
    v_mov_b32 v9, s13
    v_cndmask_b32 v6, v6, v8, vcc
    v_cndmask_b32 v7, v7, v9, vcc
    v_lshrrev_b32 v3, 4, v0          ; g
    s_mul_i32 s24, s23, 80
    v_lshl_add_u32 v8, v3, 2, s24    ; 80w + 4g
    v_mul_u32_u24 v9, 3072, v8
    v_and_b32 v10, 7, v0             ; c
    v_lshl_add_u32 v9, v10, 4, v9
    s_lshl_b32 s25, s20, 7
    v_add_u32 v9, s25, v9
    v_add_co_u32 v6, vcc, v6, v9
    v_addc_co_u32 v7, vcc, 0, v7, vcc
    s_mov_b32 s26, {2*3072}
    s_mov_b32 s27, 0
    s_mov_b32 s28, {14*3072}
    s_mov_b32 s29, 0
    """)
    for b in range(5):
        for i in range(4):
            a(f"global_load_dwordx4 {vr(L+16*b+4*i,4)}, v[6:7], off offset:{(i&1)*3072}")
            if i == 1: a("v_lshl_add_u64 v[6:7], v[6:7], 0, s[26:27]")
            if i == 3 and b < 4: a("v_lshl_add_u64 v[6:7], v[6:7], 0, s[28:29]")
    a(f"""
    s_lshl_b32 s24, s20, 6
    s_lshl_b32 s25, s23, 3
    s_add_u32 s24, s24, s25
    s_mul_i32 s24, s24, 1280
    s_mul_i32 s25, s21, 640
    s_add_u32 s24, s24, s25          ; soffset
    s_mul_i32 s25, s23, 5120
    s_add_u32 s25, s25, {WD}
    """)
    for i in range(5):
        a(f"""
        v_add_u32 v11, {64*i}, v0
        v_mul_u32_u24 v12, 1639, v11
        v_lshrrev_b32 v12, 16, v12       ; row = L/40
        v_mul_u32_u24 v13, 40, v12
        v_sub_u32 v11, v11, v13          ; pos
        v_and_b32 v13, 6, v12
        v_xor_b32 v11, v11, v13          ; chunk
        v_mul_u32_u24 v12, 1280, v12
        v_lshl_add_u32 v11, v11, 4, v12
        s_add_u32 m0, s25, {1024*i}
        buffer_load_dwordx4 v11, s[44:47], s24 offen lds
        """)
    mark(a,2)
    a("s_waitcnt vmcnt(25)")
    mark(a,3)
    top8(a, 4, 5, 11, 56)
    mark(a,0)
    a(f"v_mov_b32 v4, s56")
    for r in range(1, 8):
        a(f"v_cmp_eq_u32 vcc, {r}, v10\nv_mov_b32 v5, s{56+r}\nv_cndmask_b32 v4, v4, v5, vcc")
    a(f"""
    v_and_b32 v5, 0xffff, v4
    v_sub_u32 v5, 0xffff, v5         ; idx
    v_mul_u32_u24 v5, 1280, v5
    v_lshl_add_u32 v5, v8, 1, v5     ; + (80w+4g)*2
    """)
    for b in range(5):
        a(f"buffer_load_dwordx2 {vr(XF+2*b,2)}, v5, s[48:51], 0 offen offset:{32*b}")
    a(f"""
    s_or_b32 s24, s2, s23
    s_cmp_lg_u32 s24, 0
    s_cbranch_scc1 K2_NOSEL
    v_lshlrev_b32 v11, 2, v0
    v_cmp_gt_u32 vcc, 8, v0
    s_and_saveexec_b64 s[30:31], vcc
    buffer_store_dword v4, v11, s[40:43], 0 offen offset:{SM_SEL}
    s_mov_b64 exec, s[30:31]
    """)
    a.label("K2_NOSEL")
    a("s_mov_b32 s24, 0x05040100\ns_mov_b32 s25, 0x07060302\ns_waitcnt vmcnt(0)")
    mark(a,1)
    TP = 106
    ACC = [None]*8
    def perm(b, j, d):
        q = j//2; sel = 24 + (j & 1)
        a(f"v_perm_b32 v{d}, v{L+16*b+4+q}, v{L+16*b+q}, s{sel}")
        a(f"v_perm_b32 v{d+1}, v{L+16*b+12+q}, v{L+16*b+8+q}, s{sel}")
    for j in range(8): perm(0, j, TP+2*j)
    for j in range(4): ACC[j] = L+4*j
    for j in range(4): a(f"v_mfma_f32_16x16x16_bf16 {vr(ACC[j],4)}, {vr(XF,2)}, {vr(TP+2*j,2)}, 0")
    for j in range(4): perm(1, j, TP+2*j)
    for j in range(4): a(f"v_mfma_f32_16x16x16_bf16 {vr(ACC[j],4)}, {vr(XF+2,2)}, {vr(TP+2*j,2)}, {vr(ACC[j],4)}")
    for j in range(4, 8): perm(1, j, TP+2*(j-4))
    for j in range(4, 8): ACC[j] = L+16+4*(j-4)
    for j in range(4, 8): a(f"v_mfma_f32_16x16x16_bf16 {vr(ACC[j],4)}, {vr(XF,2)}, {vr(TP+2*j,2)}, 0")
    for j in range(4, 8): a(f"v_mfma_f32_16x16x16_bf16 {vr(ACC[j],4)}, {vr(XF+2,2)}, {vr(TP+2*(j-4),2)}, {vr(ACC[j],4)}")
    for b in range(2, 5):
        for j in range(8): perm(b, j, TP+2*j)
        for j in range(8): a(f"v_mfma_f32_16x16x16_bf16 {vr(ACC[j],4)}, {vr(XF+2*b,2)}, {vr(TP+2*j,2)}, {vr(ACC[j],4)}")
    mark(a,4)
    a(f"""
    v_and_b32 v11, 15, v0
    v_lshlrev_b32 v11, 5, v11
    v_lshl_add_u32 v11, v3, 4, v11
    s_lshl_b32 s26, s23, 12
    v_add_u32 v11, s26, v11
    s_mov_b32 exec_hi, 0
    """)
    for j in range(8): a(f"ds_write_b128 v11, {vr(ACC[j],4)} offset:{RED+512*j}")
    a(f"""
    s_mov_b64 exec, -1
    s_lshl_b32 s26, s23, 9
    s_add_u32 s26, s26, {RED}
    v_lshl_add_u32 v11, v0, 2, s26
    s_waitcnt lgkmcnt(0)
    s_barrier
    """)
    mark(a,5)
    for w in range(8): a(f"ds_read2st64_b32 {vr(48+2*w,2)}, v11 offset0:{16*w} offset1:{16*w+1}")
    a(f"s_mov_b32 s27, {f32(-LOG2E)}\ns_waitcnt lgkmcnt(0)")
    for w in range(1, 8): a(f"v_pk_add_f32 v[48:49], v[48:49], {vr(48+2*w,2)}")
    rnd_bf16(a, 48, 48); rnd_bf16(a, 49, 49)
    sigmoid(a, 50, 48, 27)
    a("v_mul_f32 v48, v48, v50"); rnd_bf16(a, 48, 48)
    a(f"""
    v_mul_f32 v48, v48, v49
    v_cvt_pk_bf16_f32 v48, v48, v48
    ; hbuf[t][f=8c+j], t = l%8, c = l/8, row stride 144
    v_mul_u32_u24 v11, 144, v10
    v_lshrrev_b32 v12, 3, v0
    v_lshl_add_u32 v12, v12, 4, v11
    s_lshl_b32 s26, s23, 1
    v_add_u32 v12, s26, v12
    ds_write_b16 v12, v48 offset:{HB}
    v_lshl_add_u32 v11, v3, 3, v11
    ; w_down tr address: row = 4g + i/4 ; chunk = 2cg + (i%4)/2 ; pos = chunk ^ (row & 6)
    v_bfe_u32 v12, v0, 2, 2
    v_lshl_add_u32 v12, v3, 2, v12   ; row
    v_and_b32 v13, 6, v12
    s_lshl_b32 s26, s23, 1
    v_xor_b32 v13, s26, v13
    v_lshlrev_b32 v13, 4, v13
    v_mul_u32_u24 v12, 640, v12
    v_add_u32 v12, v12, v13
    v_and_b32 v13, 3, v0
    v_lshl_add_u32 v12, v13, 3, v12
    v_add_u32 v12, {WD}, v12
    ; store offset: ((js*8+t)*640 + half*320 + 16w + 4g)*4 ; lanes with l%16>=8 out of range
    v_mul_u32_u24 v13, 2560, v10
    v_lshl_add_u32 v13, v3, 4, v13
    v_lshl_or_b32 v13, v1, 30, v13
    s_mul_i32 s26, s20, {8*2560}
    s_mul_i32 s28, s21, 1280
    s_add_u32 s26, s26, s28
    s_lshl_b32 s28, s23, 6
    s_add_u32 s26, s26, s28
    s_add_u32 s26, s26, {SM_YP}
    s_waitcnt lgkmcnt(0)
    s_barrier
    """)
    mark(a,6)
    for s_ in range(2):
        for t in range(2):
            a(f"ds_read_b64 {vr(16+4*s_+2*t,2)}, v11 offset:{HB+64*s_+32*t}")
    for i in range(3):
        if i == 2: a("s_cmp_ge_u32 s23, 4\ns_cbranch_scc1 K2_END2")
        for s_ in range(2):
            for t in range(2):
                a(f"ds_read_b64_tr_b16 {vr(24+8*i+4*s_+2*t,2)}, v12 offset:{(32*s_+16*t)*640+256*i}")
        a("s_waitcnt lgkmcnt(0)")
        d = 48+4*i
        a(f"v_mfma_f32_16x16x32_bf16 {vr(d,4)}, {vr(24+8*i,4)}, v[16:19], 0")
        a(f"v_mfma_f32_16x16x32_bf16 {vr(d,4)}, {vr(24+8*i+4,4)}, v[20:23], {vr(d,4)}")
        a(f"buffer_store_dwordx4 {vr(d,4)}, v13, s[40:43], s26 offen offset:{512*i}")
    a.label("K2_END2")
    endk(a)
    a.label("K2_END")
    a("s_endpgm")
    return nm, 128

K3_YB = 0; K3_RED = 3072; K3_WO = K3_RED + 4*5*1024
K3_LDS = K3_WO + 640*160
def gen_k3(a):
    nm = "oproj_kernel"; KIDX[0]=2; khead(a, nm)
    a(f"""
    s_load_dwordx2 s[8:9], s[0:1], 88
    s_load_dwordx2 s[4:5], s[0:1], 0
    s_load_dwordx2 s[6:7], s[0:1], 16
    s_load_dwordx2 s[10:11], s[0:1], 72
    s_cmp_ge_u32 s2, 256
    s_cbranch_scc1 K3_END
    s_and_b32 s20, s2, 7
    s_lshr_b32 s21, s2, 3
    s_and_b32 s22, s21, 3
    s_lshl_b32 s20, s20, 2
    s_add_u32 s20, s20, s22          ; rb
    s_lshr_b32 s21, s21, 2           ; cb
    v_lshrrev_b32 v1, 6, v0
    v_and_b32 v0, 63, v0
    v_readfirstlane_b32 s23, v1
    v_readfirstlane_b32 s89, v1
    s_waitcnt lgkmcnt(0)
    s_add_u32 s12, s8, {WS_SM}
    s_addc_u32 s13, s9, 0
    s_load_dwordx8 s[56:63], s[12:13], {SM_SEL}
    """)
    mark(a,2)
    srd(a, 40, 6, 0, 640*1280)
    srd(a, 44, 8, WS_O, SZ_O)
    OF=16; ACC=56; WF=76; XV=100; T=106
    a(f"""
    v_mul_u32_u24 v1, 26, v0
    v_lshrrev_b32 v1, 8, v1          ; l/10
    v_mul_u32_u24 v2, 10, v1
    v_sub_u32 v2, v0, v2
    v_mul_u32_u24 v1, 1280, v1
    v_lshl_add_u32 v1, v2, 4, v1
    s_mul_i32 s24, s23, {80*1280}
    s_mul_i32 s25, s21, 160
    s_add_u32 s24, s24, s25
    s_mul_i32 s26, s23, {80*160}
    s_mov_b32 exec_hi, 0x3ffff
    """)
    for i in range(16):
        a(f"s_add_u32 m0, s26, {K3_WO+800*i}")
        a(f"buffer_load_dwordx4 v1, s[40:43], s24 offen lds")
        if i < 15: a(f"s_add_u32 s24, s24, {5*1280}")
    a(f"""
    s_mov_b64 exec, -1
    s_and_b32 s24, s23, 3            ; tg
    s_lshr_b32 s27, s23, 2           ; kh
    v_and_b32 v2, 15, v0
    v_lshrrev_b32 v3, 4, v0          ; g
    s_lshl_b32 s28, s20, 6
    s_lshl_b32 s29, s24, 4
    s_add_u32 s29, s29, s28
    v_add_u32 v4, s29, v2
    v_mul_u32_u24 v5, {US}, v3
    v_lshl_add_u32 v5, v4, 3, v5
    s_mul_i32 s30, s27, {80*US}
    """)
    for s_ in range(10):
        for t in range(2):
            a(f"buffer_load_dwordx2 {vr(OF+4*s_+2*t,2)}, v5, s[44:47], s30 offen")
            if not (s_ == 9 and t == 1): a(f"s_add_u32 s30, s30, {4*US}")
    mark(a,3)
    srd(a, 48, 4, 0, 2048*1280)
    srd(a, 52, 8, WS_SM, SZ_SM)
    srd(a, 64, 10, 0, 2048*1280)
    a(f"""
    v_mul_u32_u24 v6, 1280, v4
    v_lshl_add_u32 v6, v3, 3, v6
    s_mul_i32 s31, s27, 96
    s_add_u32 s31, s31, s25
    v_lshlrev_b32 v7, 2, v4
    s_mov_b32 s32, {SM_G}
    buffer_load_dword v{T}, v7, s[52:55], s32 offen
    """)
    for i in range(3):
        a(f"buffer_load_dwordx2 {vr(XV+2*i,2)}, v6, s[48:51], s31 offen offset:{32*i}")
    a(f"""
    v_lshlrev_b32 v8, 3, v0
    v_mov_b32 v10, 0
    v_mov_b32 v11, 0
    s_mov_b32 exec_hi, 0xff
    ds_write_b64 v8, v[10:11] offset:{K3_YB+8*320}
    s_mov_b64 exec, -1
    v_mov_b32 v9, 8
    s_waitcnt lgkmcnt(0)
    """)
    for t in range(8):
        a(f"""
        s_andn2_b32 s33, 0xffff, s{56+t}
        s_cmp_eq_u32 s23, {t}
        s_cselect_b32 s34, s{56+t}, s34
        v_cmp_ne_u32 vcc, s33, v4
        v_cndmask_b32 v9, {t}, v9, vcc
        """)
    a(f"""
    v_mul_u32_u24 v9, 320, v9
    v_lshl_add_u32 v9, v3, 4, v9
    s_mul_i32 s33, s27, 192
    v_add_u32 v9, s33, v9
    s_andn2_b32 s33, 0xffff, s34
    s_sub_u32 s33, s33, s28
    s_cmp_ge_u32 s33, 64
    s_cbranch_scc1 K3_NOY
    s_mul_i32 s33, s23, 2560
    s_lshl_b32 s35, s25, 1
    s_add_u32 s33, s33, s35
    s_add_u32 s33, s33, {SM_YP}
    s_mov_b32 exec_hi, 0xff
    """)
    YT = ACC
    for half in range(2):
        for p in range(12):
            a(f"buffer_load_dwordx2 {vr(YT+2*p,2)}, v8, s[52:55], s33 offen")
            a(f"s_add_u32 s33, s33, {8*2560}")
        a("s_waitcnt vmcnt(0)")
        for p in range(12): a(f"v_pk_add_f32 v[10:11], v[10:11], {vr(YT+2*p,2)}")
    a(f"""
    s_ashr_i32 s35, s34, 31
    s_not_b32 s35, s35
    s_or_b32 s35, s35, 0x80000000
    s_xor_b32 s35, s35, s34
    s_and_b32 s35, s35, 0xffff0000
    v_mov_b32 v12, s35
    s_mov_b32 s36, {f32(-LOG2E)}
    """)
    sigmoid(a, 12, 12, 36); rnd_bf16(a, 12, 12)
    rnd_bf16(a, 10, 10); rnd_bf16(a, 11, 11)
    a("v_mul_f32 v10, v10, v12\nv_mul_f32 v11, v11, v12")
    rnd_bf16(a, 10, 10); rnd_bf16(a, 11, 11)
    a(f"""
    s_mul_i32 s33, s23, 320
    v_add_u32 v8, s33, v8
    ds_write_b64 v8, v[10:11] offset:{K3_YB}
    s_mov_b64 exec, -1
    """)
    a.label("K3_NOY")
    mark(a,4)
    a("s_waitcnt vmcnt(0)")
    mark(a,5)
    a(f"""
    ; wo tr address: row = 320kh + 4g + i/4 ; col bytes = (i%4)*8
    v_bfe_u32 v12, v0, 2, 2
    v_lshl_add_u32 v12, v3, 2, v12
    v_mul_u32_u24 v12, 160, v12
    v_and_b32 v13, 3, v0
    v_lshl_add_u32 v12, v13, 3, v12
    s_mul_i32 s33, s27, {320*160}
    s_add_u32 s33, s33, {K3_WO}
    v_add_u32 v12, s33, v12
    s_mul_i32 s33, s24, 5120
    s_add_u32 s33, s33, {K3_RED}
    v_lshl_add_u32 v13, v0, 4, s33
    s_waitcnt vmcnt(0) lgkmcnt(0)
    s_barrier
    """)
    mark(a,0)
    seq = [(s_, cg) for s_ in range(10) for cg in range(5)]
    def rd(n):
        s_, cg = seq[n]; f = WF + 4*(n % 6)
        for t in range(2):
            a(f"ds_read_b64_tr_b16 {vr(f+2*t,2)}, v12 offset:{(32*s_+16*t)*160+32*cg}")
    AH = 5
    for n in range(AH): rd(n)
    for n in range(50):
        s_, cg = seq[n]; f = WF + 4*(n % 6)
        rem = min(50, n+AH) - n - 1
        a(f"s_waitcnt lgkmcnt({2*rem})")
        c = "0" if s_ == 0 else vr(ACC+4*cg,4)
        a(f"v_mfma_f32_16x16x32_bf16 {vr(ACC+4*cg,4)}, {vr(f,4)}, {vr(OF+4*s_,4)}, {c}")
        if n+AH < 50: rd(n+AH)
    mark(a,1)
    a("s_nop 7\ns_cmp_eq_u32 s27, 0\ns_cbranch_scc1 K3_H0")
    def fin(mine, other, lab):
        for cg in other: a(f"ds_write_b128 v13, {vr(ACC+4*cg,4)} offset:{1024*cg}")
        a("s_waitcnt lgkmcnt(0)\ns_barrier")
        mark(a,6)
        for i, cg in enumerate(mine):
            a(f"ds_read_b128 {vr(OF+4*i,4)}, v13 offset:{1024*cg}")
            a(f"ds_read_b128 {vr(OF+12+4*i,4)}, v9 offset:{K3_YB+64*i}")
        a(f"v_sub_f32 v{T+1}, 1.0, v{T}"); rnd_bf16(a, T+1, T+1)
        a("s_waitcnt lgkmcnt(0)")
        for i, cg in enumerate(mine):
            A_ = ACC+4*cg; Y = OF+12+4*i; X = XV+2*i; t = WF
            for e in range(4): a(f"v_add_f32 v{A_+e}, v{A_+e}, v{OF+4*i+e}")
            a(f"v_cvt_pk_bf16_f32 v{t}, v{A_}, v{A_+1}\nv_cvt_pk_bf16_f32 v{t+1}, v{A_+2}, v{A_+3}")
            def unpack(d, s):
                a(f"v_lshlrev_b32 v{d}, 16, v{s}\nv_and_b32 v{d+1}, 0xffff0000, v{s}")
                a(f"v_lshlrev_b32 v{d+2}, 16, v{s+1}\nv_and_b32 v{d+3}, 0xffff0000, v{s+1}")
            def rnd4(r):
                a(f"v_cvt_pk_bf16_f32 v{t}, v{r}, v{r+1}\nv_cvt_pk_bf16_f32 v{t+1}, v{r+2}, v{r+3}")
                unpack(r, t)
            unpack(A_, t)
            for e in range(4): a(f"v_mul_f32 v{A_+e}, v{A_+e}, v{T}")
            rnd4(A_)
            unpack(t+4, X)
            for e in range(4): a(f"v_add_f32 v{Y+e}, v{Y+e}, v{t+4+e}")
            rnd4(Y)
            for e in range(4): a(f"v_mul_f32 v{Y+e}, v{Y+e}, v{T+1}")
            rnd4(Y)
            for e in range(4): a(f"v_add_f32 v{A_+e}, v{A_+e}, v{Y+e}")
            if DELTA:
                for e in range(4): a(f"v_add_f32 v{A_+e}, {f32(DELTA)}, v{A_+e}")
            o = t+8+2*i
            a(f"v_cvt_pk_bf16_f32 v{o}, v{A_}, v{A_+1}\nv_cvt_pk_bf16_f32 v{o+1}, v{A_+2}, v{A_+3}")
            a(f"buffer_store_dwordx2 {vr(o,2)}, v6, s[64:67], s31 offen offset:{32*i}")
        endk(a)
    fin([3,4],[0,1,2],"h1")
    a.label("K3_H0")
    fin([0,1,2],[3,4],"h0")
    a.label("K3_END")
    a("s_endpgm")
    return nm, 112

isr = lambda w: (w>>5)==7 and (w&4)
GROUPS = {0:[("gemm-c",[w for w in range(256) if not isr(w)],[0,1,2,3]),("gemm-l",[w for w in range(256) if not isr(w)],[4,5,6,7]),("r",[w for w in range(256) if isr(w)],[0])],
          1:[("moe",list(range(48)),[0,1,2,3]),("attn",list(range(48,304)),list(range(8)))],
          2:[("op",list(range(256)),list(range(8)))]}
HEADER = open("cdna_kernels/%s.s.ref" % NAME).read().split("; Override launch geometry")[0]

def build():
    a = Asm()
    ks = [gen_k1(a), gen_k2(a), gen_k3(a)]
    launches = [("qkv_kernel",256,512,K1_LDS),("attn_kernel",256+NMOE,512,K2_LDS),("oproj_kernel",256,512,K3_LDS)]
    if EXTRA:
        khead(a, "nop_kernel"); a("s_endpgm"); ks.append(("nop_kernel", 8))
        launches += [("nop_kernel",256,64,0)]*EXTRA
    if SEQ:
        if not EXTRA:
            khead(a, "nop_kernel"); a("s_endpgm"); ks.append(("nop_kernel", 8))
        allk = launches[:3] + [("nop_kernel",256,64,0)]
        launches = [allk[int(c)] for c in SEQ]
        if "3" not in SEQ: launches = launches
    out = HEADER
    for (n,g,b,l) in launches: out += f"; @launch kernel={n} grid=({g},1,1) block=({b},1,1) lds={l}\n"
    out += '.amdgcn_target "amdgcn-amd-amdhsa--gfx950"\n'
    out += a.text()
    for i,(n,v) in enumerate(ks): out += kd(n, max(v, STV[i]+1) if STAMP else v)
    return out

if __name__ == "__main__":
    p = sys.argv[1] if len(sys.argv) > 1 else "cdna_kernels/%s.s" % NAME
    for o in sys.argv[2:]:
        k, v = o.split("="); globals()[k] = eval(v)
    open(p, "w").write(build())
    print("wrote", p)
```
